```python
import torch

def _softmax(x, axis=-1):
    return torch.softmax(x, dim=axis)

def _gelu(x):
    return torch.nn.functional.gelu(x, approximate='tanh')

def _silu(x):
    return torch.nn.functional.silu(x)

def _sigmoid(x):
    return torch.sigmoid(x)

def _layernorm(x, axis=-1, eps=1e-05):
    m = x.mean(dim=axis, keepdim=True)
    v = x.var(dim=axis, keepdim=True, unbiased=False)
    return (x - m) / torch.sqrt(v + eps)

def _scatter_add(tgt, idx, src, axis=0):
    return tgt.clone().index_add_(axis, idx, src)

def _segment_sum(src, seg, n):
    out = torch.zeros((n,) + src.shape[1:], dtype=src.dtype)
    return out.index_add_(0, seg, src)

def _pad(x, pw):
    flat = tuple((v for pair in reversed(pw) for v in pair))
    return torch.nn.functional.pad(x, flat)
kernel_name = 'standalone__video_timesformer__vision'

def setup_inputs():

    _w = lambda a: (lambda t: t.to(torch.bfloat16) if t.is_floating_point() else t)(torch.as_tensor(a))
    T = 8
    p = 14
    HW = 512 // p * p
    N = (HW // p) ** 2
    C = 192
    return {'x': _w((lambda *s: torch.randn(*s, dtype=torch.bfloat16) * 0.1)(1, T, N, C)), 'wqkv_t': _w((lambda *s: torch.randn(*s, dtype=torch.bfloat16) * 0.1)(C, 3 * C)), 'wo_t': _w((lambda *s: torch.randn(*s, dtype=torch.bfloat16) * 0.1)(C, C)), 'wqkv_s': _w((lambda *s: torch.randn(*s, dtype=torch.bfloat16) * 0.1)(C, 3 * C)), 'wo_s': _w((lambda *s: torch.randn(*s, dtype=torch.bfloat16) * 0.8)(C, C))}

def reference(x, wqkv_t, wo_t, wqkv_s, wo_s):
    B, T, N, C = x.shape
    scale = C ** (-0.5)
    xt = (lambda x, *d: x.permute(*d))(x, 0, 2, 1, 3).reshape(B * N, T, C)
    h = _layernorm(xt, axis=-1)
    qkv = h @ wqkv_t
    q, k, v = (qkv[..., :C].clone(), qkv[..., C:2 * C].clone(), qkv[..., 2 * C:].clone())
    a = _softmax(torch.einsum('btc,bsc->bts', q, k) * scale, axis=-1)
    xt = xt + torch.einsum('bts,bsc->btc', a, v) @ wo_t
    x1 = (lambda x, *d: x.permute(*d))(xt.reshape(B, N, T, C), 0, 2, 1, 3)
    xs = x1.reshape(B * T, N, C)
    h = _layernorm(xs, axis=-1)
    qkv = h @ wqkv_s
    q, k, v = (qkv[..., :C].clone(), qkv[..., C:2 * C].clone(), qkv[..., 2 * C:].clone())
    a = _softmax(torch.einsum('bnc,bmc->bnm', q, k) * scale, axis=-1)
    xs = xs + torch.einsum('bnm,bmc->bnc', a, v) @ wo_s
    return xs.reshape(B, T, N, C)
```

```python
import re

def _expand(tok):
    tok = tok.strip()
    m = re.fullmatch(r'([vas])(\d+)', tok)
    if m: return [(m.group(1), int(m.group(2)))]
    m = re.fullmatch(r'([vas])\[(\d+):(\d+)\]', tok)
    if m: return [(m.group(1), i) for i in range(int(m.group(2)), int(m.group(3)) + 1)]
    if tok == 'vcc': return [('s', 'vcc')]
    if tok == 'exec': return [('s', 'exec')]
    if tok == 'm0': return [('s', 'm0')]
    return []

def _split_ops(s):
    out, depth, cur = [], 0, ''
    for ch in s:
        if ch == '[': depth += 1
        if ch == ']': depth -= 1
        if ch == ',' and depth == 0:
            out.append(cur.strip()); cur = ''
        else: cur += ch
    if cur.strip(): out.append(cur.strip())
    return out

TRANS = ('v_exp_f32', 'v_log_f32', 'v_rcp_f32', 'v_rsq_f32', 'v_sqrt_f32', 'v_sin_f32', 'v_cos_f32')

class Inst:
    __slots__ = ('text', 'op', 'kind', 'defs', 'uses', 'mdefs', 'muses', 'passes', 'srcc', 'srcab', 'wide_store', 'dpp', 'comment', 'store_data')
    def __init__(self, text, mdefs=(), muses=()):
        self.text = text.strip()
        self.mdefs = tuple(mdefs); self.muses = tuple(muses)
        self.passes = 0; self.srcc = []; self.srcab = []; self.wide_store = False; self.dpp = False; self.store_data = []
        t = self.text
        if t.endswith(':'):
            self.op = 'label'; self.kind = 'label'; self.defs = []; self.uses = []; return
        if t.startswith('.') or t.startswith(';'):
            self.op = 'directive'; self.kind = 'directive'; self.defs = []; self.uses = []; return
        parts = t.split(None, 1)
        op = parts[0]; rest = parts[1] if len(parts) > 1 else ''
        self.op = op
        ops = _split_ops(rest)
        mods = ''
        if ops:
            last = ops[-1].split(None, 1)
            ops[-1] = last[0]
            mods = last[1] if len(last) > 1 else ''
        ops = [o.lstrip('-') for o in ops]
        ops = [re.sub(r'^abs\((.*)\)$', r'\1', o) for o in ops]
        ops = [o.strip('|') for o in ops]
        R = [_expand(o) for o in ops]
        flat = lambda L: [r for x in L for r in x]
        d, u = [], []
        if op.startswith('v_mfma'):
            self.kind = 'mfma'; d = R[0]; u = flat(R[1:]); self.srcc = R[3]; self.srcab = R[1] + R[2]
            self.passes = 8 if '32x32' in op else 4
        elif op.startswith('ds_read') or op.startswith('ds_bpermute') or op.startswith('ds_swizzle'):
            self.kind = 'ds'; d = R[0]; u = flat(R[1:])
        elif op.startswith('ds_write') or op.startswith('ds_add') or op.startswith('ds_max'):
            self.kind = 'ds'; u = flat(R)
        elif op.startswith('buffer_load') or op.startswith('global_load'):
            self.kind = 'vmem'
            if ' lds' in (' ' + mods) or 'load_lds' in op:
                u = flat(R) + [('s', 'm0')]
            else:
                d = R[0]; u = flat(R[1:])
        elif op.startswith('buffer_store') or op.startswith('global_store'):
            self.kind = 'vmem'; u = flat(R)
            self.store_data = R[0] if op.startswith('buffer_store') else R[1]
            self.wide_store = ('x3' in op or 'x4' in op)
        elif op.startswith('buffer_atomic') or op.startswith('global_atomic'):
            self.kind = 'vmem'; u = flat(R)
            if 'sc0' in mods: d = R[0]
        elif op.startswith('buffer_inv') or op.startswith('buffer_wbl2'):
            self.kind = 'vmem'
        elif op.startswith('s_load') or op.startswith('s_memtime') or op.startswith('s_memrealtime'):
            self.kind = 'smem'; d = R[0]; u = flat(R[1:])
        elif op == 's_waitcnt': self.kind = 'wait'
        elif op == 's_nop': self.kind = 'nop'
        elif op == 's_barrier': self.kind = 'barrier'
        elif op.startswith('s_cbranch') or op == 's_branch': self.kind = 'branch'
        elif op in ('s_endpgm', 's_setprio', 's_sleep'): self.kind = 'other'
        elif op.startswith('s_cmp'): self.kind = 'salu'; u = flat(R); d = [('s', 'scc')]
        elif op.startswith('s_'):
            self.kind = 'salu'; d = R[0]; u = flat(R[1:])
            if 'saveexec' in op: d = d + [('s', 'exec')]; u = u + [('s', 'exec')]
        elif op.startswith('v_'):
            self.kind = 'trans' if op.replace('_e32', '').replace('_e64', '') in TRANS else 'valu'
            if op.startswith('v_cmp'):
                d = R[0]; u = flat(R[1:])
            elif op.startswith('v_permlane') and 'swap' in op:
                d = R[0] + R[1]; u = R[0] + R[1]
            elif op.startswith('v_add_co') or op.startswith('v_sub_co') or op.startswith('v_addc'):
                d = R[0] + R[1]; u = flat(R[2:])
            elif op.startswith('v_fmac') or op.startswith('v_dot2c') or op.startswith('v_pk_fmac'):
                d = R[0]; u = flat(R)
            else:
                d = R[0]; u = flat(R[1:])
            if 'row_' in mods or 'quad_perm' in mods or '_dpp' in op:
                self.dpp = True
                u = u + R[0]
        else:
            raise ValueError('unknown instruction: ' + t)
        self.defs = d; self.uses = u

class Asm:
    def __init__(self):
        self.ins = []
    def __call__(self, text, mdefs=(), muses=()):
        for line in text.strip().split('\n'):
            line = line.split(';')[0].strip() if not line.strip().startswith(';') else line.strip()
            if not line: continue
            self.ins.append(Inst(line, mdefs, muses))
        return self
    def extend(self, other):
        self.ins.extend(other.ins if isinstance(other, Asm) else other)

def is_vreg(r): return r[0] in ('v', 'a')

def insert_waits(ins):
    out = []
    vq, lq = [], []
    smem_pending = set()
    def need(q, regs, mems, writes):
        idx = -1
        for i, e in enumerate(q):
            if (e['defs'] & regs) or (e['mdefs'] & mems): idx = i
            elif e['defs'] & writes: idx = i
        return idx
    for x in ins:
        if x.kind == 'wait':
            m = re.search(r'vmcnt\((\d+)\)', x.text)
            if m:
                n = int(m.group(1))
                if len(vq) > n: vq = vq[len(vq) - n:] if n else []
            m = re.search(r'lgkmcnt\((\d+)\)', x.text)
            if m:
                n = int(m.group(1))
                if n == 0: smem_pending = set()
                if len(lq) > n: lq = lq[len(lq) - n:] if n else []
            out.append(x); continue
        if x.kind in ('label', 'directive', 'nop', 'barrier', 'branch', 'other'):
            if not x.muses:
                out.append(x); continue
        regs = set(x.uses); writes = set(x.defs); mems = set(x.muses)
        w = []
        if smem_pending & (regs | writes):
            w.append('lgkmcnt(0)'); smem_pending = set(); lq = []
        iv = need(vq, regs, mems, writes)
        il = need(lq, regs, mems, writes)
        if iv >= 0:
            n = min(len(vq) - 1 - iv, 62)
            iv = len(vq) - 1 - n
            w.append('vmcnt(%d)' % n); vq = vq[iv + 1:]
        if il >= 0 and not any('lgkm' in s for s in w):
            n = min(len(lq) - 1 - il, 14)
            il = len(lq) - 1 - n
            w.append('lgkmcnt(%d)' % n); lq = lq[il + 1:]
        if x.kind == 'vmem' and len(vq) >= 62 and not any('vmcnt' in s for s in w):
            w.insert(0, 'vmcnt(60)'); vq = vq[len(vq) - 60:]
        if w: out.append(Inst('s_waitcnt ' + ' '.join(w)))
        out.append(x)
        if x.kind == 'vmem':
            vq.append(dict(defs=set(x.defs), mdefs=set(x.mdefs)))
        elif x.kind == 'ds':
            lq.append(dict(defs=set(x.defs), mdefs=set(x.mdefs)))
        elif x.kind == 'smem':
            smem_pending |= set(x.defs)
    return out

def states(x):
    if x.kind in ('label', 'directive'): return 0
    if x.kind == 'nop': return int(x.text.split()[1], 0) + 1
    return 1

def required_gap(p, c):
    need = 0
    pd = set(p.defs); cu = set(c.uses); cd = set(c.defs)
    pv = p.kind in ('valu', 'trans')
    cv = c.kind in ('valu', 'trans')
    if pv and c.kind == 'mfma' and 'op_sel:' in p.text:
        need = max(need, 2)
    if pv:
        vd = {r for r in pd if is_vreg(r)}
        sd = {r for r in pd if r[0] == 's'}
        if c.kind == 'mfma' and vd & cu: need = max(need, 2)
        if cv and vd & cu:
            if c.op.startswith('v_permlane'): need = max(need, 2)
            if c.dpp: need = max(need, 2)
            if c.op.startswith('v_readlane') or c.op.startswith('v_readfirstlane'): need = max(need, 1)
            if p.kind == 'trans' and c.kind != 'trans': need = max(need, 1)
            if p.kind == 'trans' and c.kind == 'trans': need = max(need, 1)
        if sd:
            if c.kind == 'vmem' and sd & cu: need = max(need, 5)
            if cv and sd & cu: need = max(need, 2)
            if cv and ('s', 'exec') in sd: need = max(need, 4)
            if c.kind in ('salu', 'branch', 'smem') and sd & cu: need = max(need, 4)
            if c.kind == 'branch' and ('vcc' in c.op) and ('s', 'vcc') in sd: need = max(need, 5)
    if p.kind == 'mfma':
        n = {4: (8, 6), 8: (12, 10)}[p.passes]
        if c.kind == 'mfma':
            if pd & set(c.srcab): need = max(need, n[0])
            if pd & set(c.srcc):
                same = (list(p.defs) == list(c.srcc)) and p.op == c.op
                if not same: need = max(need, n[1])
            if pd & cd and not (pd & set(c.srcc)): need = max(need, n[1])
        elif c.kind in ('valu', 'trans', 'vmem', 'ds'):
            if pd & (cu | cd): need = max(need, n[0])
        if cv and set(p.srcc) & cd: need = max(need, {4: 3, 8: 7}[p.passes])
    if p.kind == 'salu':
        if ('s', 'm0') in pd and c.kind == 'vmem' and ('s', 'm0') in cu: need = max(need, 1)
        if ('s', 'exec') in pd and c.dpp: need = max(need, 0)
    if p.kind == 'vmem' and p.wide_store and cv and set(p.store_data) & cd: need = max(need, 2)
    if p.kind == 'vmem' and p.store_data and c.kind == 'mfma' and set(p.store_data) & cd: need = max(need, 2)
    return need

def pad_hazards(ins):
    out = []
    for c in ins:
        if c.kind in ('label', 'directive', 'nop', 'wait'):
            out.append(c); continue
        dist = 0; pad = 0
        for p in reversed(out):
            if dist >= 20: break
            if p.kind not in ('label', 'directive'):
                g = required_gap(p, c)
                if g > dist: pad = max(pad, g - dist)
            dist += states(p)
        while pad > 0:
            n = min(pad, 16)
            out.append(Inst('s_nop %d' % (n - 1))); pad -= n
        out.append(c)
    return out

def finalize(a):
    ins = insert_waits(a.ins)
    ins = pad_hazards(ins)
    return '\n'.join(('' if x.kind in ('label', 'directive') else '  ') + x.text for x in ins) + '\n'
```

```python
T, N, C = 8, 1296, 192
XBYTES = T * N * C * 2
HOFF = 0
X1OFF = 0x400000
STATOFF = 0x400000
WQKOFF = 0x800000
WVOOFF = 0x820000
WSUSE = 0x1000000
STAMPOFF = 0x900000
TIMG = 41 * 12288
XROW = N * C * 2
SCALE_L2E = (C ** -0.5) * 1.4426950408889634
import struct
def f2u(f): return struct.unpack('<I', struct.pack('<f', f))[0]
def vr(b, n=1): return f'v{b}' if n == 1 else f'v[{b}:{b+n-1}]'
def ar(b, n=1): return f'a{b}' if n == 1 else f'a[{b}:{b+n-1}]'
def sr(b, n=1): return f's{b}' if n == 1 else f's[{b}:{b+n-1}]'
def srd(a, base, nbytes):
    a(f's_mov_b32 s{base+2}, {nbytes}\ns_mov_b32 s{base+3}, 0x00020000')

class Stamps:
    def __init__(self, a, enable, kernel_idx):
        self.a, self.en, self.k, self.n = a, enable, kernel_idx, 0
        self.names = []
    def start(self):
        if not self.en: return
        self.a('s_memrealtime s[56:57]')
        self.stamp('start')
    def stamp(self, name):
        if not self.en: return
        self.a(f's_memtime s[{60+2*self.n}:{61+2*self.n}]'); self.n += 1; self.names.append(name)
        assert self.n <= 16
    def dump(self, sW, srd, vtmp):
        if not self.en: return
        a = self.a
        a('s_memrealtime s[58:59]')
        a('s_waitcnt lgkmcnt(0)')
        a(f's_lshl_b32 s54, s2, 2\ns_add_u32 s54, s54, s{sW}\ns_lshl_b32 s54, s54, 7\ns_add_u32 s54, s54, {STAMPOFF + self.k*0x40000}')
        vals = ['s56', 's58'] + [f's{60+2*i}' for i in range(self.n)]
        a(f'v_mov_b32 v{vtmp}, 0')
        for i, v in enumerate(vals):
            a(f'v_mov_b32 v{vtmp+1}, {v}')
            a(f'buffer_store_dword v{vtmp+1}, v{vtmp}, {srd}, s54 offen offset:{4*i}')
```

```python
from asmb import *
from common import *

NSL = 9
CH = 3072
WRING = NSL * CH
HL = 4 * WRING
SX = HL + 18432
ST = SX + 12288
XIBASE = ST + 1536
PX = XIBASE + 18432
LDS_A = PX + 1536

def build_main(stamps=False, dbg=()):
    a = Asm()
    stp = Stamps(a, stamps, 0)
    stp.start()
    sW, sN0, sT0, sT1, sT2, sWB = 24, 25, 26, 27, 28, 29
    sC = 30; sMask = 32
    sP1, sP2 = 34, 35
    sTen, sNl, sInv = 36, 37, 38
    sSo = 39; sW96 = 40; sK1152 = 41; sK384 = 42
    vLane, vG, vI = 1, 2, 3
    vT = [4, 5, 6, 7, 8]
    vWq = [9, 10, 11]; vWo = [12, 13, 14]; vTr = 15
    vHr = [20, 21]
    vXa = [22, 23, 24]; vHw = [25, 26, 27]
    vJunk = [28, 29]
    vXw = [30, 31, 32]; vOw = [33, 34, 35]; vSw = 36; vSr = 37; vStW = [38, 39]; vStR = 40
    vGw = [41, 42, 43]; vRoL = [44, 45, 46]; vRoG = [47, 48, 49]
    vX = 50
    vP = 50
    accA, accB = 68, 104
    vQ, vK, vV = 140, 158, 176
    vS = 194
    vSx = 140
    accC = 220
    vPA = [218, 219]
    vStG = 217
    aH = 0; aW = 72
    XI = ST + 1536
    def I(text, md=(), mu=()): return (text, md, mu)
    def emit(it): a(it[0], mdefs=it[1], muses=it[2])

    a(f"""
    s_load_dwordx2 s[8:9], s[0:1], 0
    s_load_dwordx2 s[12:13], s[0:1], 8
    s_load_dwordx2 s[16:17], s[0:1], 16
    s_load_dwordx2 s[20:21], s[0:1], 56
    v_lshrrev_b32 v{vT[0]}, 6, v0
    v_and_b32 v{vLane}, 63, v0
    v_readfirstlane_b32 s{sW}, v{vT[0]}
    v_lshrrev_b32 v{vG}, 4, v{vLane}
    v_and_b32 v{vI}, 15, v{vLane}
    s_mul_i32 s{sN0}, s2, 6
    s_mov_b32 s10, {XBYTES}
    s_mov_b32 s11, 0x00020000
    s_mov_b32 s14, {192*576*2}
    s_mov_b32 s15, 0x00020000
    s_mov_b32 s18, {192*192*2}
    s_mov_b32 s19, 0x00020000
    s_mov_b32 s22, {WSUSE}
    s_mov_b32 s23, 0x00020000
    s_mul_i32 s{sT1}, s{sW}, 12
    """)
    for j in range(3):
        a(f"""
        v_add_u32 v{vHw[j]}, s{sT1}, v{vG}
        v_add_u32 v{vHw[j]}, {4*j}, v{vHw[j]}
        v_and_b32 v{vT[4]}, 7, v{vHw[j]}
        v_mul_u32_u24 v{vT[4]}, 1296, v{vT[4]}
        v_lshrrev_b32 v{vXa[j]}, 3, v{vHw[j]}
        v_add3_u32 v{vXa[j]}, v{vXa[j]}, v{vT[4]}, s{sN0}
        v_mul_u32_u24 v{vXa[j]}, 384, v{vXa[j]}
        v_lshl_add_u32 v{vXa[j]}, v{vI}, 3, v{vXa[j]}
        """)
    a(f"""
    s_lshr_b32 s{sT0}, s2, 3
    s_mul_i32 s{sT0}, s{sT0}, 12288
    v_lshlrev_b32 v{vT[1]}, 7, v0
    v_add_u32 v{vT[1]}, s{sT0}, v{vT[1]}
    v_cmp_gt_u32 vcc, 96, v0
    v_mov_b32 v{vT[2]}, 0x7fffffff
    s_nop 0
    v_cndmask_b32 v{vT[1]}, v{vT[2]}, v{vT[1]}, vcc
    v_subrev_u32 v{vT[2]}, {192*576*2}, v{vT[1]}
    s_mul_i32 s{sWB}, s{sW}, {WRING}
    """)
    def pf():
        if 'nopf' in dbg: return
        a(f'buffer_load_dword v{vJunk[0]}, v{vT[1]}, s[12:15], 0 offen')
        a(f'buffer_load_dword v{vJunk[1]}, v{vT[2]}, s[16:19], 0 offen')
    if 'pffirst' in dbg: pf()
    for j in range(3):
        for m in range(3):
            a(f'buffer_load_dwordx2 {vr(vX+6*j+2*m,2)}, v{vXa[j]}, s[8:11], 0 offen offset:{128*m}')
    if 'pffirst' not in dbg: pf()
    def dma_items(c):
        part, ks = divmod(c, 6)
        sl = c % NSL; out = []
        so = (32 * ks) * 1152 + part * 384 if part < 3 else (32 * ks) * 384
        for k in range(3):
            grp = []
            if k == 0:
                grp.append(I(f's_add_u32 s{sSo}, s{sW96}, {so}'))
                grp.append(I(f's_add_u32 m0, s{sWB}, {sl*CH}'))
            if part < 3: grp.append(I(f'buffer_load_dwordx4 v{vWq[k]}, s[12:15], s{sSo} offen offset:{1024*k} lds', [('W', c)], [('rd', c - NSL)]))
            else: grp.append(I(f'buffer_load_dwordx4 v{vWo[k]}, s[16:19], s{sSo} offen offset:{1024*k} lds', [('W', c)], [('rd', c - NSL)]))
            out.append(grp)
        return out
    stp.stamp('issued')
    a_main = a
    a(f's_mul_i32 s{sW96}, s{sW}, 96\ns_movk_i32 s{sK1152}, 1152\ns_movk_i32 s{sK384}, 384')
    for k in range(3):
        a(f"""
        v_add_u32 v{vT[0]}, {64*k}, v{vLane}
        v_mul_u32_u24 v{vT[1]}, 43691, v{vT[0]}
        v_lshrrev_b32 v{vT[1]}, 18, v{vT[1]}          ; row = u / 6
        v_mul_u32_u24 v{vT[2]}, 6, v{vT[1]}
        v_sub_u32 v{vT[2]}, v{vT[0]}, v{vT[2]}        ; unit = u % 6
        v_lshlrev_b32 v{vT[2]}, 4, v{vT[2]}
        v_subrev_u32 v{vT[2]}, {1024*k}, v{vT[2]}
        v_mad_u32_u24 v{vWq[k]}, v{vT[1]}, s{sK1152}, v{vT[2]}
        v_mad_u32_u24 v{vWo[k]}, v{vT[1]}, s{sK384}, v{vT[2]}
        """.replace('OFF', ''))
    a = Asm()
    a(f's_mov_b32 s{sT2}, {XI}')
    for j in range(3):
        a(f"""
        v_and_b32 v{vT[0]}, 7, v{vHw[j]}              ; tk & 7
        v_lshrrev_b32 v{vT[1]}, 1, v{vI}
        v_xor_b32 v{vT[0]}, v{vT[0]}, v{vT[1]}
        v_lshlrev_b32 v{vT[0]}, 4, v{vT[0]}
        v_and_b32 v{vT[1]}, 1, v{vI}
        v_lshl_add_u32 v{vT[0]}, v{vT[1]}, 3, v{vT[0]}
        v_mul_u32_u24 v{vT[1]}, 384, v{vHw[j]}
        v_add3_u32 v{vXw[j]}, v{vT[0]}, v{vT[1]}, s{sT2}
        """)
        a(f"""
        v_lshrrev_b32 v{vT[2]}, 4, v{vHw[j]}         ; tt
        v_mul_u32_u24 v{vT[2]}, 6, v{vT[2]}
        v_lshrrev_b32 v{vT[4]}, 3, v{vI}              ; spar
        v_add_u32 v{vT[2]}, v{vT[2]}, v{vT[4]}
        v_lshlrev_b32 v{vT[2]}, 10, v{vT[2]}
        v_mul_u32_u24 v{vT[4]}, 12, v{vT[4]}
        v_and_b32 v{vT[3]}, 15, v{vHw[j]}             ; ii
        v_xor_b32 v{vT[3]}, v{vT[3]}, v{vT[4]}
        v_and_b32 v{vT[4]}, 3, v{vI}                  ; g'
        v_xor_b32 v{vT[3]}, v{vT[3]}, v{vT[4]}
        v_lshl_add_u32 v{vT[3]}, v{vT[4]}, 4, v{vT[3]}
        v_lshl_add_u32 v{vT[2]}, v{vT[3]}, 4, v{vT[2]}
        v_bfe_u32 v{vT[4]}, v{vI}, 2, 1
        v_lshl_add_u32 v{vT[2]}, v{vT[4]}, 3, v{vT[2]}
        v_add_u32 v{vHw[j]}, {HL}, v{vT[2]}
        """)
    a(f"""
    v_lshrrev_b32 v{vT[0]}, 2, v{vLane}            ; 4g + (i>>2)
    v_mul_u32_u24 v{vT[0]}, 96, v{vT[0]}
    v_and_b32 v{vT[1]}, 3, v{vLane}
    v_lshl_add_u32 v{vT[0]}, v{vT[1]}, 3, v{vT[0]}
    v_add_u32 v{vTr}, s{sWB}, v{vT[0]}
    """)
    a(f"""
    v_xor_b32 v{vT[0]}, v{vI}, v{vG}
    v_lshl_add_u32 v{vT[1]}, v{vG}, 4, v{vT[0]}
    v_lshlrev_b32 v{vHr[0]}, 4, v{vT[1]}
    v_add_u32 v{vHr[0]}, {HL}, v{vHr[0]}
    v_xor_b32 v{vHr[1]}, 192, v{vHr[0]}
    """)
    assert HL % 256 == 0
    for ct in range(3):
        a(f"""
        s_mul_i32 s{sT0}, s{sW}, 3
        s_add_u32 s{sT0}, s{sT0}, {ct}            ; a4
        s_lshr_b32 s{sT1}, s{sT0}, 1              ; s
        s_and_b32 s{sT0}, s{sT0}, 1               ; hi
        s_lshl_b32 s{sT0}, s{sT0}, 3
        s_and_b32 s{sT2}, s{sT1}, 1
        s_mul_i32 s{sT2}, s{sT2}, 192
        s_lshl_b32 s{sT1}, s{sT1}, 10
        s_add_u32 s{sT0}, s{sT0}, s{sT1}
        v_xor_b32 v{vOw[ct]}, s{sT2}, v{vHr[0]}
        v_add_u32 v{vOw[ct]}, s{sT0}, v{vOw[ct]}
        """)
    a(f"""
    s_mul_i32 s{sT0}, s{sW}, 3072
    s_add_u32 s{sT0}, s{sT0}, {SX}
    v_lshlrev_b32 v{vSw}, 4, v{vLane}
    v_add_u32 v{vSr}, {SX}, v{vSw}
    v_add_u32 v{vSw}, s{sT0}, v{vSw}
    s_mov_b32 s{sC}, {f2u(SCALE_L2E)}
    s_mov_b32 s{sInv}, {f2u(1.0/192)}
    v_lshrrev_b32 v{vT[0]}, 5, v{vLane}
    v_bfe_u32 v{vT[1]}, v{vLane}, 3, 1
    v_cmp_eq_u32 s[{sMask}:{sMask+1}], v{vT[0]}, v{vT[1]}
    v_lshrrev_b32 v{vT[0]}, 1, v{vG}
    v_mul_u32_u24 v{vT[0]}, 48, v{vT[0]}
    v_add_u32 v{vT[0]}, v{vT[0]}, v{vI}
    v_and_b32 v{vT[1]}, 1, v{vG}
    v_lshl_add_u32 v{vT[1]}, v{vT[1]}, 4, v{vT[0]}
    s_lshl_b32 s{sT0}, s{sW}, 2
    s_add_u32 s{sT0}, s{sT0}, {ST}
    v_lshlrev_b32 v{vT[1]}, 4, v{vT[1]}
    v_add_u32 v{vStW[0]}, s{sT0}, v{vT[1]}
    v_add_u32 v{vT[0]}, 32, v{vT[0]}
    v_lshlrev_b32 v{vT[0]}, 4, v{vT[0]}
    v_add_u32 v{vStW[1]}, s{sT0}, v{vT[0]}
    v_lshlrev_b32 v{vStR}, 4, v{vI}
    v_add_u32 v{vStR}, {ST}, v{vStR}
    """)
    for et in range(3):
        a(f"""
        s_mul_i32 s{sT0}, s{sW}, 6
        s_add_u32 s{sT0}, s{sT0}, {2*et}
        v_lshrrev_b32 v{vT[0]}, 1, v{vG}
        v_add_u32 v{vT[0]}, s{sT0}, v{vT[0]}        ; U
        v_and_b32 v{vT[1]}, 7, v{vT[0]}             ; u
        v_lshrrev_b32 v{vT[0]}, 3, v{vT[0]}         ; p
        v_and_b32 v{vT[2]}, 7, v{vI}
        v_xor_b32 v{vT[1]}, v{vT[1]}, v{vT[2]}
        v_lshlrev_b32 v{vT[1]}, 4, v{vT[1]}
        v_lshl_add_u32 v{vT[1]}, v{vT[0]}, 7, v{vT[1]}
        v_and_b32 v{vT[2]}, 1, v{vG}
        v_lshl_add_u32 v{vT[1]}, v{vT[2]}, 3, v{vT[1]}
        v_mul_u32_u24 v{vT[2]}, 384, v{vI}
        v_add_u32 v{vGw[et]}, v{vT[1]}, v{vT[2]}
        v_add_u32 v{vXa[et]}, {XI}, v{vGw[et]}
        """)
    a(f"""
    v_lshrrev_b32 v{vT[0]}, 3, v{vLane}       ; t
    v_and_b32 v{vT[1]}, 7, v{vLane}           ; slot
    """)
    for aa in range(2):
        if aa == 0: a(f's_mov_b32 s{sT0}, s{sW}')
        else: a(f's_and_b32 s{sT0}, s{sW}, 1\ns_add_u32 s{sT0}, s{sT0}, 4')
        a(f"""
        s_add_u32 s{sT1}, s{sT0}, s{sN0}          ; n
        s_lshr_b32 s{sT2}, s{sT1}, 1
        s_and_b32 s{sT2}, s{sT2}, 3
        s_lshl_b32 s{sT2}, s{sT2}, 1              ; swz(n&7)
        v_xor_b32 v{vT[2]}, s{sT2}, v{vT[1]}      ; u
        v_xor_b32 v{vT[2]}, v{vT[2]}, v{vT[0]}    ; u ^ t
        v_lshlrev_b32 v{vT[2]}, 4, v{vT[2]}
        s_mul_i32 s{sT0}, s{sT0}, 3072            ; nl*8*384
        v_mul_u32_u24 v{vT[3]}, 384, v{vT[0]}
        v_add3_u32 v{vRoL[aa]}, v{vT[2]}, v{vT[3]}, s{sT0}
        s_lshr_b32 s{sT2}, s{sT1}, 5
        s_mul_i32 s{sT2}, s{sT2}, 12288
        s_and_b32 s{sT1}, s{sT1}, 31
        s_lshl_b32 s{sT1}, s{sT1}, 7
        s_add_u32 s{sT2}, s{sT2}, s{sT1}
        v_mul_u32_u24 v{vT[3]}, {TIMG}, v{vT[0]}
        v_lshl_add_u32 v{vT[3]}, v{vT[1]}, 4, v{vT[3]}
        v_add_u32 v{vRoG[aa]}, s{sT2}, v{vT[3]}
        """)
    a(f's_movk_i32 s{sP1}, 4096\ns_movk_i32 s{sP2}, 8192')
    a(f"""
    s_lshl_b32 s{sT0}, s{sW}, 1
    s_add_u32 s{sT0}, s{sT0}, s{sN0}
    v_lshrrev_b32 v{vT[0]}, 3, v{vI}
    v_add_u32 v{vT[0]}, s{sT0}, v{vT[0]}      ; n
    v_and_b32 v{vT[1]}, 7, v{vI}
    v_mul_u32_u24 v{vT[1]}, 1296, v{vT[1]}
    v_add_u32 v{vT[0]}, v{vT[0]}, v{vT[1]}
    v_lshlrev_b32 v{vT[0]}, 3, v{vT[0]}
    v_add_u32 v{vT[0]}, {STATOFF}, v{vT[0]}
    s_cmp_eq_u32 s{sW}, 3
    s_cselect_b32 s{sT1}, 0, 1
    v_cmp_gt_u32 vcc, s{sT1}, v{vG}
    v_mov_b32 v{vT[1]}, 0x7fffffff
    s_nop 0
    v_cndmask_b32 v{vStG}, v{vT[1]}, v{vT[0]}, vcc
    """)
    a(f"""
    s_cmp_eq_u32 s{sW}, 3
    s_cselect_b32 s{sT0}, 0, s{sW}
    s_lshl_b32 s{sT1}, s{sT0}, 10
    v_add_u32 v{vSr}, s{sT1}, v{vSr}
    s_lshl_b32 s{sT1}, s{sT0}, 9
    s_add_u32 s{sT1}, s{sT1}, {PX}
    v_lshlrev_b32 v{vT[0]}, 3, v{vLane}
    v_add_u32 v{vPA[0]}, s{sT1}, v{vT[0]}
    v_add_u32 v{vPA[1]}, {PX}, v{vT[0]}
    """)
    addr_ins = a.ins
    a = a_main
    npre = 3 if 'pre3' in dbg else (6 if 'pre6' in dbg else 0)
    nln = 12
    for x in dbg:
        if x.startswith('ln'): nln = int(x[2:])
    dq = [g for c in range(24) for g in dma_items(c)]
    for _ in range(npre):
        for it in dq.pop(0): emit(it)
    a.ins.extend(addr_ins)
    stp.stamp('addr')
    ln = []
    vSum = [accA + 2 * j for j in range(3)]; vSq = [accA + 6 + 2 * j for j in range(3)]
    vF = accA + 12
    for j in range(3):
        for m in range(3):
            ln.append(I(f'ds_write_b64 v{vXw[j]}, {vr(vX+6*j+2*m,2)} offset:{128*m}', ['ximg']))
    ln.insert(0, I(f's_mov_b32 s{sT0}, 0x3f803f80'))
    for j in range(3):
        ln.append(I(f'v_mov_b32 v{vSum[j]}, 0')); ln.append(I(f'v_mov_b32 v{vSq[j]}, 0'))
    for k in range(6):
        for j in range(3):
            ln.append(I(f'v_dot2c_f32_bf16 v{vSum[j]}, s{sT0}, v{vX+6*j+k}'))
            ln.append(I(f'v_dot2c_f32_bf16 v{vSq[j]}, v{vX+6*j+k}, v{vX+6*j+k}'))
    for rot in (8, 4, 2, 1):
        for j in range(3):
            ln.append(I(f'v_add_f32_dpp v{vSum[j]}, v{vSum[j]}, v{vSum[j]} row_ror:{rot} row_mask:0xf bank_mask:0xf'))
            ln.append(I(f'v_add_f32_dpp v{vSq[j]}, v{vSq[j]}, v{vSq[j]} row_ror:{rot} row_mask:0xf bank_mask:0xf'))
    def ln_stats(S_, Q_, T_):
        out = []
        for s_, t_ in zip(S_, T_): out.append(I(f'v_mul_f32 v{s_}, s{sInv}, v{s_}'))
        for s_, t_ in zip(S_, T_): out.append(I(f'v_mul_f32 v{t_}, v{s_}, v{s_}'))
        for q_, t_ in zip(Q_, T_): out.append(I(f'v_fma_f32 v{q_}, v{q_}, s{sInv}, -v{t_}'))
        for q_ in Q_: out.append(I(f'v_max_f32 v{q_}, 0, v{q_}'))
        for q_ in Q_: out.append(I(f'v_add_f32 v{q_}, {f2u(1e-5)}, v{q_}'))
        for q_ in Q_: out.append(I(f'v_rsq_f32 v{q_}, v{q_}'))
        for s_, q_ in zip(S_, Q_): out.append(I(f'v_mul_f32_e64 v{s_}, -v{s_}, v{q_}'))
        return out
    ln += ln_stats(vSum, vSq, vT[0:3])
    for j in range(3):
        for k in range(6):
            ln.append(I(f'v_lshlrev_b32 v{vF+2*k}, 16, v{vX+6*j+k}'))
            ln.append(I(f'v_and_b32 v{vF+2*k+1}, 0xffff0000, v{vX+6*j+k}'))
        for k in range(6):
            ln.append(I(f'v_pk_fma_f32 {vr(vF+2*k,2)}, {vr(vF+2*k,2)}, {vr(vSq[j],2)}, {vr(vSum[j],2)} op_sel_hi:[1,0,0]'))
        for k in range(6):
            ln.append(I(f'v_cvt_pk_bf16_f32 v{vX+6*j+k}, v{vF+2*k}, v{vF+2*k+1}'))
        for m in range(3):
            ln.append(I(f'ds_write_b64 v{vHw[j]}, {vr(vX+6*j+2*m,2)} offset:{2048*m}', ['himg']))
    d1 = [dq.pop(0) for _ in range(nln)]
    step = (len(ln) - 12) // (len(d1) + 1)
    for n_, it in enumerate(ln):
        emit(it)
        if n_ == 1: stp.stamp('xarr')
        if n_ >= 12 and (n_ - 12) % step == step - 1 and d1:
            for x in d1.pop(0): emit(x)
    while d1:
        for x in d1.pop(0): emit(x)
    stp.stamp('ln1')
    a('s_barrier', muses=['himg', 'ximg'])
    stp.stamp('bar0')
    for s in range(6):
        for tt in range(3):
            a(f'ds_read_b128 {ar(aH+(tt*6+s)*4,4)}, v{vHr[s&1]} offset:{(tt*6+s)*1024}', mdefs=['hrd'])
    fcount = [0]
    issued = [24 * 3 - len(dq)]
    def trreads(c, ct):
        b = aW + 4 * (fcount[0] % 5); fcount[0] += 1
        sl = c % NSL
        return b, [I(f'ds_read_b64_tr_b16 {ar(b+2*hf,2)}, v{vTr} offset:{sl*CH+hf*1536+ct*32}', [('rd', c)], [('W', c)]) for hf in range(2)]
    def acc(base, ct, tt): return base + (ct * 3 + tt) * 4
    frs = [(c, ct) for c in range(24) for ct in range(3)]
    fbuf = {}
    nread = [0]
    def read_ahead(upto):
        while nread[0] <= min(upto, len(frs) - 1):
            c, ct = frs[nread[0]]
            if c >= limit[0]: break
            b, rd = trreads(c, ct)
            for it in rd: emit(it)
            fbuf[(c, ct)] = b; nread[0] += 1
    limit = [24]
    def stage(st, pre_issued=None, fill=(), mid=None, cinit=False):
        part, half = st >> 1, st & 1
        base = [accA, accB, accA, accC][part]
        fill = list(fill); nfill = len(fill); done = 0
        gap = 0
        for n in range(9):
            c = 3 * st + n // 3; ct = n % 3; ks = c % 6
            idx = c * 3 + ct
            read_ahead(idx + 3)
            if n == 7 and mid is not None:
                a('s_barrier', muses=list(mid[0]))
                for it in mid[1]: emit(it)
            b = fbuf[(c, ct)]
            for tt in range(3):
                d = vr(acc(base, ct, tt), 4)
                c_ = '0' if (ks == 0 and not cinit) else d
                hf_ = ar(aH + (tt * 6 + ks) * 4, 4)
                if part == 2: a(f'v_mfma_f32_16x16x32_bf16 {d}, {hf_}, {ar(b,4)}, {c_}')
                else: a(f'v_mfma_f32_16x16x32_bf16 {d}, {ar(b,4)}, {hf_}, {c_}')
                gap += 1
                want = (nfill * gap) // 27
                while done < want:
                    emit(fill[done]); done += 1
                if tt == 0 and dq:
                    cc = (24 * 3 - len(dq)) // 3
                    if cc - NSL < c:
                        for x in dq.pop(0): emit(x)
        while done < nfill:
            emit(fill[done]); done += 1
        return None
    def cvts(base, dst_of):
        out = []
        for tt in range(3):
            for ct in range(3):
                s_ = acc(base, ct, tt); d_ = dst_of(tt, ct)
                out.append(I(f'v_cvt_pk_bf16_f32 v{d_}, v{s_}, v{s_+1}'))
                out.append(I(f'v_cvt_pk_bf16_f32 v{d_+1}, v{s_+2}, v{s_+3}'))
        return out
    pre = stage(0)
    pre = stage(1, pre)
    stp.stamp('q')
    xr = [I(f'ds_read_b64 {vr(vV+(tt*3+et)*2,2)}, v{vXa[et]} offset:{tt*6144}') for tt in range(3) for et in range(3)]
    xu = []
    for tt in range(3):
        for et in range(3):
            b = acc(accC, et, tt); x_ = vV + (tt * 3 + et) * 2
            xu += [I(f'v_lshlrev_b32 v{b}, 16, v{x_}'), I(f'v_and_b32 v{b+1}, 0xffff0000, v{x_}'),
                   I(f'v_lshlrev_b32 v{b+2}, 16, v{x_+1}'), I(f'v_and_b32 v{b+3}, 0xffff0000, v{x_+1}')]
    pre = stage(2, pre, fill=xr + cvts(accA, lambda tt, ct: vQ + tt * 6 + ct * 2))
    pre = stage(3, pre, fill=xu)
    stp.stamp('k')
    f4 = [I('s_nop 0')] * 3 + cvts(accB, lambda tt, ct: vK + tt * 6 + ct * 2)
    for tt in range(3):
        f4.append(I(f'v_mfma_f32_16x16x32_bf16 {vr(vS+4*tt,4)}, {vr(vK+6*tt,4)}, {vr(vQ+6*tt,4)}, 0'))
    for tt in range(3):
        f4.append(I(f'v_mfma_f32_16x16x16_bf16 {vr(vS+4*tt,4)}, {vr(vK+6*tt+4,2)}, {vr(vQ+6*tt+4,2)}, {vr(vS+4*tt,4)}'))
    for tt in range(3):
        f4.append(I(f'ds_write_b128 v{vSw}, {vr(vS+4*tt,4)} offset:{tt*1024}', ['sx']))
    def squeeze(lst, frac):
        n = len(lst); tot = int(n / frac) + 1
        return lst + [None] * (tot - n)
    _emit = emit
    def emit(it):
        if it is not None: _emit(it)
    sreads = [I(f'ds_read_b128 {vr(vSx+w2*4,4)}, v{vSr} offset:{w2*3072}') for w2 in range(4)]
    pre = stage(4, pre, fill=squeeze(f4, 20 / 27), mid=(['sx'], sreads))
    f5 = []
    b = vSx
    f5.append(I(f'v_pk_add_f32 {vr(b,2)}, {vr(b,2)}, {vr(b+4,2)}'))
    f5.append(I(f'v_pk_add_f32 {vr(b+2,2)}, {vr(b+2,2)}, {vr(b+6,2)}'))
    f5.append(I(f'v_pk_add_f32 {vr(b+8,2)}, {vr(b+8,2)}, {vr(b+12,2)}'))
    f5.append(I(f'v_pk_add_f32 {vr(b+10,2)}, {vr(b+10,2)}, {vr(b+14,2)}'))
    f5.append(I(f'v_pk_add_f32 {vr(b,2)}, {vr(b,2)}, {vr(b+8,2)}'))
    f5.append(I(f'v_pk_add_f32 {vr(b+2,2)}, {vr(b+2,2)}, {vr(b+10,2)}'))
    m_, m2_ = b + 4, b + 5
    f5.append(I(f'v_max3_f32 v{m_}, v{b}, v{b+1}, v{b+2}'))
    f5.append(I(f'v_max_f32 v{m_}, v{m_}, v{b+3}'))
    f5.append(I(f'v_mov_b32 v{m2_}, v{m_}'))
    f5.append(None); f5.append(None)
    f5.append(I(f'v_permlane16_swap_b32 v{m_}, v{m2_}'))
    f5.append(I(f'v_max_f32 v{m_}, v{m_}, v{m2_}'))
    f5.append(I(f'v_mul_f32 v{m_}, s{sC}, v{m_}'))
    for r in range(4): f5.append(I(f'v_fma_f32 v{b+r}, v{b+r}, s{sC}, -v{m_}'))
    for r in range(4): f5.append(I(f'v_exp_f32 v{b+r}, v{b+r}'))
    f5.append(None)
    f5.append(I(f'v_add_f32 v{m_}, v{b}, v{b+1}')); f5.append(I(f'v_add_f32 v{m2_}, v{b+2}, v{b+3}'))
    f5.append(I(f'v_add_f32 v{m_}, v{m_}, v{m2_}'))
    f5.append(I(f'v_mov_b32 v{m2_}, v{m_}'))
    f5.append(None); f5.append(None)
    f5.append(I(f'v_permlane16_swap_b32 v{m_}, v{m2_}'))
    f5.append(I(f'v_add_f32 v{m_}, v{m_}, v{m2_}'))
    f5.append(I(f'v_rcp_f32 v{m_}, v{m_}'))
    f5.append(None)
    f5.append(I(f'v_cndmask_b32 v{m_}, 0, v{m_}, s[{sMask}:{sMask+1}]'))
    f5.append(I(f'v_pk_mul_f32 {vr(b,2)}, {vr(b,2)}, {vr(m_,2)} op_sel_hi:[1,0]'))
    f5.append(I(f'v_pk_mul_f32 {vr(b+2,2)}, {vr(b+2,2)}, {vr(m_,2)} op_sel_hi:[1,0]'))
    f5.append(I(f'v_cvt_pk_bf16_f32 v{b+6}, v{b}, v{b+1}'))
    f5.append(I(f'v_cvt_pk_bf16_f32 v{b+7}, v{b+2}, v{b+3}'))
    f5.append(I(f'ds_write_b64 v{vPA[0]}, {vr(b+6,2)}', ['px']))
    preads = [I(f'ds_read_b64 {vr(vP+2*tt,2)}, v{vPA[1]} offset:{tt*512}') for tt in range(3)]
    limit[0] = 18
    pre = stage(5, pre, fill=squeeze(f5, 20 / 27), mid=(['px'], preads))
    stp.stamp('v')
    cv = cvts(accA, lambda tt, ct: vV + (tt * 3 + ct) * 2)
    for it in cv: emit(it)
    for tt in range(3):
        for ct in range(3):
            a(f'v_mfma_f32_16x16x16_bf16 {vr(acc(accA,ct,tt),4)}, {vr(vV+(tt*3+ct)*2,2)}, {vr(vP+2*tt,2)}, 0')
    vO = vK
    for tt in range(3):
        for ct in range(3):
            s_ = acc(accA, ct, tt); d_ = vO + (tt * 3 + ct) * 2
            a(f'v_cvt_pk_bf16_f32 v{d_}, v{s_}, v{s_+1}')
            a(f'v_cvt_pk_bf16_f32 v{d_+1}, v{s_+2}, v{s_+3}')
            a(f'ds_write_b64 v{vOw[ct]}, {vr(d_,2)} offset:{tt*6144}', mdefs=['oimg'])
    while dq:
        for x in dq.pop(0): emit(x)
    a('s_barrier', muses=['oimg'])
    limit[0] = 24
    read_ahead(18 * 3 + 2)
    for s in range(6):
        for tt in range(3):
            a(f'ds_read_b128 {ar(aH+(tt*6+s)*4,4)}, v{vHr[s&1]} offset:{(tt*6+s)*1024}')
    stp.stamp('oimg')
    limit[0] = 24
    pre = stage(6, pre, cinit=True)
    pre = stage(7, pre, cinit=True)
    stp.stamp('oproj')
    sm = [vS + 0, vS + 2, vS + 4]; sq = [vS + 6, vS + 8, vS + 10]
    for tt in range(3):
        regs = [acc(accC, et, tt) + 2 * h for et in range(3) for h in range(2)]
        a(f'v_pk_add_f32 {vr(sm[tt],2)}, {vr(regs[0],2)}, {vr(regs[1],2)}')
        a(f'v_pk_mul_f32 {vr(sq[tt],2)}, {vr(regs[0],2)}, {vr(regs[0],2)}')
    for k in range(1, 6):
        for tt in range(3):
            regs = [acc(accC, et, tt) + 2 * h for et in range(3) for h in range(2)]
            if k >= 2: a(f'v_pk_add_f32 {vr(sm[tt],2)}, {vr(sm[tt],2)}, {vr(regs[k],2)}')
            a(f'v_pk_fma_f32 {vr(sq[tt],2)}, {vr(regs[k],2)}, {vr(regs[k],2)}, {vr(sq[tt],2)}')
    for tt in range(3):
        a(f'v_add_f32 v{sm[tt]}, v{sm[tt]}, v{sm[tt]+1}')
        a(f'v_add_f32 v{sq[tt]}, v{sq[tt]}, v{sq[tt]+1}')
    for tt in range(3): a(f'v_permlane32_swap_b32 v{sm[tt]}, v{sq[tt]}')
    for tt in range(3): a(f'v_add_f32 v{sm[tt]}, v{sm[tt]}, v{sq[tt]}')
    cp = vS + 1
    a(f'v_mov_b32 v{cp}, v{sm[2]}')
    a(f'v_permlane16_swap_b32 v{sm[0]}, v{sm[1]}')
    a(f'v_permlane16_swap_b32 v{sm[2]}, v{cp}')
    a(f'v_add_f32 v{sm[0]}, v{sm[0]}, v{sm[1]}')
    a(f'v_add_f32 v{sm[2]}, v{sm[2]}, v{cp}')
    a(f'ds_write_b32 v{vStW[0]}, v{sm[0]}', mdefs=['st'])
    a(f'ds_write_b32 v{vStW[1]}, v{sm[2]}', mdefs=['st'])
    a('s_barrier', muses=['st'])
    stp.stamp('stbar')
    vR = accA
    for stat in range(2):
        for tt in range(3):
            a(f'ds_read_b128 {vr(vR+(stat*3+tt)*4,4)}, v{vStR} offset:{(stat*48+16*tt)*16}')
    mu = [vS + 0, vS + 2, vS + 4]; rs = [vS + 6, vS + 8, vS + 10]
    for stat, dst in ((0, mu), (1, rs)):
        for tt in range(3):
            b = vR + (stat * 3 + tt) * 4
            a(f'v_pk_add_f32 {vr(b,2)}, {vr(b,2)}, {vr(b+2,2)}')
        for tt in range(3):
            b = vR + (stat * 3 + tt) * 4
            a(f'v_add_f32 v{dst[tt]}, v{b}, v{b+1}')
    vMS = vQ
    st_out = ln_stats(mu, rs, vT[0:3])
    for n_, it in enumerate(st_out):
        emit(it)
        if n_ == 2:
            for tt in range(3): a(f'v_mov_b32 v{vMS+2*tt}, v{mu[tt]}')
        if n_ == 14:
            for tt in range(3): a(f'v_mov_b32 v{vMS+2*tt+1}, v{rs[tt]}')
        if n_ == 17:
            for tt in range(3): a(f'v_mul_f32 v{vMS+2*tt+1}, v{vMS+2*tt+1}, v{rs[tt]}')
    a(f"""
    s_cmp_eq_u32 s{sW}, 1
    s_cselect_b64 vcc, -1, 0
    v_cndmask_b32 v{vMS}, v{vMS}, v{vMS+2}, vcc
    v_cndmask_b32 v{vMS+1}, v{vMS+1}, v{vMS+3}, vcc
    s_cmp_eq_u32 s{sW}, 2
    s_cselect_b64 vcc, -1, 0
    v_cndmask_b32 v{vMS}, v{vMS}, v{vMS+4}, vcc
    v_cndmask_b32 v{vMS+1}, v{vMS+1}, v{vMS+5}, vcc
    """)
    a(f'buffer_store_dwordx2 {vr(vMS,2)}, v{vStG}, s[20:23], 0 offen sc1')
    vPk2 = vV
    for tt in range(3):
        for et in range(3):
            b = acc(accC, et, tt); d_ = vPk2 + (tt * 3 + et) * 2
            a(f'v_pk_fma_f32 {vr(b,2)}, {vr(b,2)}, {vr(rs[tt],2)}, {vr(mu[tt],2)} op_sel_hi:[1,0,0]')
            a(f'v_pk_fma_f32 {vr(b+2,2)}, {vr(b+2,2)}, {vr(rs[tt],2)}, {vr(mu[tt],2)} op_sel_hi:[1,0,0]')
        for et in range(3):
            b = acc(accC, et, tt); d_ = vPk2 + (tt * 3 + et) * 2
            a(f'v_cvt_pk_bf16_f32 v{d_}, v{b}, v{b+1}')
            a(f'v_cvt_pk_bf16_f32 v{d_+1}, v{b+2}, v{b+3}')
            a(f'ds_write_b64 v{vGw[et]}, {vr(d_,2)} offset:{tt*6144}', mdefs=['stg'])
    a('s_barrier', muses=['stg'])
    stp.stamp('stg')
    vOut = accA
    for aa in range(2):
        for p in range(3):
            a(f'ds_read_b128 {vr(vOut+(aa*3+p)*4,4)}, v{vRoL[aa]} offset:{128*p}')
    for aa in range(2):
        if aa == 1:
            a(f's_cmp_ge_u32 s{sW}, 2')
            a('s_cbranch_scc1 LA_nost')
        for p in range(3):
            so = ['0', f's{sP1}', f's{sP2}'][p]
            a(f'buffer_store_dwordx4 {vr(vOut+(aa*3+p)*4,4)}, v{vRoG[aa]}, s[20:23], {so} offen sc1')
    a('LA_nost:')
    stp.stamp('stores')
    if stamps:
        a('s_waitcnt vmcnt(0)')
        stp.stamp('drained')
    stp.dump(sW, 's[20:23]', 4)
    build_main.names = stp.names
    a('s_endpgm')
    return finalize(a)

def build_spare():
    a = Asm()
    SWQ, SWO, SWS = 12, 16, 20
    sW, sT0, sT1, sT2, sIdx, sCt, sS = 24, 26, 27, 28, 29, 30, 31
    vLane, vG, vI = 1, 2, 3
    vT = [4, 5, 6, 7, 8]
    vA0, vA1, vB = 9, 10, 11
    vAf = 16
    vBf = 64
    vRaw = 96
    vD = 150
    a(f"""
    s_load_dwordx2 s[12:13], s[0:1], 24
    s_load_dwordx2 s[16:17], s[0:1], 32
    s_load_dwordx2 s[20:21], s[0:1], 56
    v_lshrrev_b32 v{vT[0]}, 6, v0
    v_and_b32 v{vLane}, 63, v0
    v_readfirstlane_b32 s{sW}, v{vT[0]}
    v_lshrrev_b32 v{vG}, 4, v{vLane}
    v_and_b32 v{vI}, 15, v{vLane}
    s_mov_b32 s14, {192*576*2}
    s_mov_b32 s15, 0x00020000
    s_mov_b32 s18, {192*192*2}
    s_mov_b32 s19, 0x00020000
    s_mov_b32 s22, {WSUSE}
    s_mov_b32 s23, 0x00020000
    s_sub_u32 s{sIdx}, s2, 216
    s_lshl_b32 s{sIdx}, s{sIdx}, 2
    s_add_u32 s{sIdx}, s{sIdx}, s{sW}
    s_cmp_ge_u32 s{sIdx}, 72
    s_cbranch_scc1 LA_wvo
    """)
    head = finalize(a)
    a = Asm()
    a(f"""
    s_waitcnt lgkmcnt(0)
    s_mul_hi_u32 s{sCt}, s{sIdx}, {(2**32 + 5)//6}
    s_mul_i32 s{sT0}, s{sCt}, 6
    s_sub_u32 s{sS}, s{sIdx}, s{sT0}
    ; A rows: d = 32 s + 8 (i>>2) + 4 b + (i&3)
    v_lshrrev_b32 v{vT[0]}, 2, v{vI}
    v_lshlrev_b32 v{vT[0]}, 3, v{vT[0]}
    v_and_b32 v{vT[1]}, 3, v{vI}
    v_add_u32 v{vT[0]}, v{vT[0]}, v{vT[1]}         ; 8(i>>2)+(i&3)
    s_lshl_b32 s{sT0}, s{sS}, 5
    v_add_u32 v{vT[1]}, s{sT0}, v{vT[0]}
    v_mul_u32_u24 v{vA0}, 1152, v{vT[1]}
    v_lshl_add_u32 v{vA0}, v{vG}, 4, v{vA0}
    v_add_u32 v{vA1}, {4*1152}, v{vA0}
    s_lshr_b32 s{sT0}, s{sCt}, 1
    s_lshl_b32 s{sT0}, s{sT0}, 5
    s_and_b32 s{sT1}, s{sCt}, 1
    s_lshl_b32 s{sT1}, s{sT1}, 2
    s_add_u32 s{sT0}, s{sT0}, s{sT1}
    v_add_u32 v{vT[1]}, s{sT0}, v{vT[0]}
    v_mul_u32_u24 v{vB}, 1152, v{vT[1]}
    v_lshl_add_u32 v{vB}, v{vG}, 4, v{vB}
    """)
    for es in range(6):
        a(f'buffer_load_dwordx4 {vr(vAf+8*es,4)}, v{vA0}, s[12:15], 0 offen offset:{64*es}')
        a(f'buffer_load_dwordx4 {vr(vAf+8*es+4,4)}, v{vA1}, s[12:15], 0 offen offset:{64*es}')
        a(f'buffer_load_dwordx4 {vr(vBf+4*es,4)}, v{vB}, s[12:15], 0 offen offset:{384+64*es}')
    for es in range(6):
        for b in range(2):
            d = vr(vD + 4 * b, 4)
            a(f'v_mfma_f32_16x16x32_bf16 {d}, {vr(vAf+8*es+4*b,4)}, {vr(vBf+4*es,4)}, {"0" if es == 0 else d}')
    a(f's_mov_b32 s{sT0}, {f2u(SCALE_L2E)}')
    for r in range(8): a(f'v_mul_f32 v{vD+r}, s{sT0}, v{vD+r}')
    for r in range(4): a(f'v_cvt_pk_bf16_f32 v{vD+r}, v{vD+2*r}, v{vD+2*r+1}')
    a(f"""
    s_lshl_b32 s{sT0}, s{sIdx}, 10
    s_add_u32 s{sT0}, s{sT0}, {WQKOFF}
    v_lshlrev_b32 v{vT[0]}, 4, v{vLane}
    buffer_store_dwordx4 {vr(vD,4)}, v{vT[0]}, s[20:23], s{sT0} offen
    s_endpgm
    """)
    wqk = finalize(a)
    a = Asm()
    a(f"""
    s_waitcnt lgkmcnt(0)
    s_sub_u32 s{sIdx}, s{sIdx}, 72
    s_mul_hi_u32 s{sCt}, s{sIdx}, {(2**32 + 5)//6}
    s_mul_i32 s{sT0}, s{sCt}, 6
    s_sub_u32 s{sS}, s{sIdx}, s{sT0}
    s_lshl_b32 s{sT0}, s{sS}, 5
    v_add_u32 v{vT[0]}, s{sT0}, v{vI}
    v_mul_u32_u24 v{vA0}, 1152, v{vT[0]}
    v_lshl_add_u32 v{vA0}, v{vG}, 4, v{vA0}
    v_add_u32 v{vA1}, {16*1152}, v{vA0}
    s_mul_hi_u32 s{sT0}, s{sCt}, {(2**32 + 2)//3}      ; w'
    s_mul_i32 s{sT1}, s{sT0}, 3
    s_sub_u32 s{sT1}, s{sCt}, s{sT1}                    ; et
    s_mul_i32 s{sT0}, s{sT0}, 48
    s_cmp_eq_u32 s{sT1}, 2
    s_cselect_b32 s{sT2}, 2, 3
    s_cselect_b32 s{sT1}, 8, s{sT1}
    s_lshl_b32 s{sT1}, s{sT1}, 2
    s_add_u32 s{sT0}, s{sT0}, s{sT1}
    v_lshrrev_b32 v{vT[0]}, 2, v{vI}
    v_lshlrev_b32 v{vT[0]}, s{sT2}, v{vT[0]}
    v_and_b32 v{vT[1]}, 3, v{vI}
    v_add3_u32 v{vT[0]}, v{vT[0]}, v{vT[1]}, s{sT0}     ; e
    v_lshlrev_b32 v{vT[0]}, 1, v{vT[0]}
    v_mul_u32_u24 v{vT[1]}, {8*384}, v{vG}
    v_add_u32 v{vB}, v{vT[0]}, v{vT[1]}
    """)
    for cs in range(6):
        a(f'buffer_load_dwordx4 {vr(vAf+8*cs,4)}, v{vA0}, s[12:15], 0 offen offset:{768+64*cs}')
        a(f'buffer_load_dwordx4 {vr(vAf+8*cs+4,4)}, v{vA1}, s[12:15], 0 offen offset:{768+64*cs}')
    for cs in range(6):
        a(f's_mov_b32 s{sT2}, {cs*32*384}')
        for j in range(8):
            a(f'buffer_load_ushort v{vRaw+8*cs+j}, v{vB}, s[16:19], s{sT2} offen offset:{384*j}')
    for cs in range(6):
        for j in range(4):
            a(f'v_lshl_or_b32 v{vBf+4*cs+j}, v{vRaw+8*cs+2*j+1}, 16, v{vRaw+8*cs+2*j}')
        for b in range(2):
            d = vr(vD + 4 * b, 4)
            a(f'v_mfma_f32_16x16x32_bf16 {d}, {vr(vAf+8*cs+4*b,4)}, {vr(vBf+4*cs,4)}, {"0" if cs == 0 else d}')
    for r in range(4): a(f'v_cvt_pk_bf16_f32 v{vD+r}, v{vD+2*r}, v{vD+2*r+1}')
    a(f"""
    s_lshl_b32 s{sT0}, s{sIdx}, 10
    s_add_u32 s{sT0}, s{sT0}, {WVOOFF}
    v_lshlrev_b32 v{vT[0]}, 4, v{vLane}
    buffer_store_dwordx4 {vr(vD,4)}, v{vT[0]}, s[20:23], s{sT0} offen
    s_endpgm
    """)
    wvo = finalize(a)
    return head + wqk + 'LA_wvo:\n' + wvo

def build_A(name, stamps=False, dbg=()):
    s = f""".globl {name}
.p2align 8
.type {name},@function
{name}:
  s_cmp_ge_u32 s2, 252
  s_cbranch_scc1 LA_end
  s_cmp_ge_u32 s2, 216
  s_cbranch_scc1 LA_spare
"""
    s += build_main(stamps, dbg)
    s += 'LA_spare:\n' + build_spare()
    s += 'LA_end:\n  s_endpgm\n'
    return s
```

```python
from asmb import *
from common import *

WREG = 36864
SL = 12288
GI = 135168
LI = 153600
LX = 161792
LDS_B = 162560
NSTEP = 10

def build_main(fallback=True, stamps=False, dbg=(), D=3, NB=5):
    a = Asm()
    stp = Stamps(a, stamps, 1)
    stp.start()
    sW, sT, sQb, sT0, sT1, sT2, sWB = 24, 25, 26, 27, 28, 29, 30
    sOff, sTB, sEnd, sBeg = 31, 32, 33, 34
    sFb = 35
    sH = [36, 37, 38, 39]
    sX = [40, 41, 42]
    vLane, vG, vI = 1, 2, 3
    vT = [4, 5, 6, 7, 8, 9]
    vK = [10, 11]; vV = [12, 13, 14, 15]; vD = [16, 17, 18]
    vX1b = 19; vPl = 20; vX1a = 26; vOa = 27
    vJunk = 111
    vNeg = 28; vP = 40; vS = 64; vO = 112
    aG, aF, aL, aOne, aQuart, aId, aW, aPart = 0, 72, 104, 116, 120, 122, 128, 200
    assert NB <= 8
    def Sreg(buf, kt, qt): return vS + buf * 24 + (kt * 3 + qt) * 4
    def Preg(buf, qt): return vP + buf * 12 + qt * 4
    def Oreg(n, qt): return vO + (n * 3 + qt) * 4
    WS = 's[20:23]'; OUT = 's[16:19]'
    a(f"""
    s_load_dwordx2 s[20:21], s[0:1], 56
    s_load_dwordx2 s[16:17], s[0:1], 40
    v_lshrrev_b32 v{vT[0]}, 6, v0
    v_and_b32 v{vLane}, 63, v0
    v_readfirstlane_b32 s{sW}, v{vT[0]}
    v_lshlrev_b32 v{vD[0]}, 4, v{vLane}
    s_and_b32 s{sT}, s2, 7
    s_lshr_b32 s{sQb}, s2, 3
    s_mov_b32 s22, {WSUSE}
    s_mov_b32 s23, 0x00020000
    s_mul_i32 s{sTB}, s{sT}, {TIMG}
    s_mul_i32 s{sWB}, s{sW}, {WREG}
    """)
    for idx in range(2):
        g_, l_ = sH[2*idx], sH[2*idx+1]
        if idx == 0: a(f's_mov_b32 s{sT0}, s{sW}')
        else: a(f's_and_b32 s{sT0}, s{sW}, 1\ns_add_u32 s{sT0}, s{sT0}, 4')
        a(f"""
        s_mul_i32 s{sT1}, s{sQb}, 6
        s_add_u32 s{sT1}, s{sT1}, s{sT0}        ; kb
        s_lshr_b32 s{sT2}, s{sT1}, 2
        s_mul_i32 s{sT2}, s{sT2}, 12288
        s_and_b32 s{sT1}, s{sT1}, 3
        s_lshl_b32 s{sT1}, s{sT1}, 10
        s_add_u32 s{sT2}, s{sT2}, s{sT1}
        s_add_u32 s{g_}, s{sT2}, s{sTB}
        s_and_b32 s{sT1}, s{sT0}, 1
        s_lshl_b32 s{sT1}, s{sT1}, 10
        """)
        if idx == 0:
            a(f"""
            s_lshr_b32 s{sT2}, s{sT0}, 1
            s_mul_i32 s{sT2}, s{sT2}, 6144
            s_add_u32 s{sT1}, s{sT1}, s{sT2}
            s_add_u32 s{l_}, s{sT1}, 12288
            """)
        else:
            a(f's_add_u32 s{l_}, s{sT1}, {12288 + 2*6144}')
    a(f"""
    s_mul_i32 s{sT0}, s{sW}, 6144
    s_add_u32 s{sX[0]}, s{sT0}, {WQKOFF}
    s_add_u32 s{sX[1]}, s{sX[0]}, 24576
    s_add_u32 s{sX[2]}, s{sX[0]}, 49152
    v_add_u32 v{vD[1]}, 4096, v{vD[0]}
    v_add_u32 v{vD[2]}, 8192, v{vD[0]}
    """)
    for idx in range(2):
        g_, l_ = sH[2*idx], sH[2*idx+1]
        for p in range(3):
            a(f's_add_u32 m0, s{l_}, {p*2048}')
            a(f'buffer_load_dwordx4 v{vD[p]}, {WS}, s{g_} offen lds', mdefs=['hq'])
    def wqk_load(s, j): return (f'buffer_load_dwordx4 {ar(aW+(j*6+s)*4,4)}, v{vD[s>>2]}, {WS}, s{sX[j]} offen offset:{(s&3)*1024}', (), ())
    if 'nopf' not in dbg:
        a(f"""
        s_mul_i32 s{sT0}, s{sQb}, 22
        v_add_u32 v{vT[0]}, s{sT0}, v{vLane}
        v_cmp_gt_u32 vcc, 22, v{vLane}
        v_lshlrev_b32 v{vT[0]}, 7, v{vT[0]}
        s_lshr_b32 s{sT0}, s{sW}, 1
        s_lshl_b32 s{sT0}, s{sT0}, 17
        s_add_u32 s{sT0}, s{sT0}, {WQKOFF}
        v_mov_b32 v{vT[1]}, 0x7fffffff
        v_cndmask_b32 v{vT[0]}, v{vT[1]}, v{vT[0]}, vcc
        """)
        a(f'buffer_load_dword v{vJunk}, v{vT[0]}, {WS}, s{sT0} offen')
    npre = 12
    for x in dbg:
        if x.startswith('wpre'): npre = int(x[4:])
    wq_all = [wqk_load(s, j) for s in range(6) for j in range(3)]
    left_items = []
    def L(t_, md=(), mu=()): left_items.append((t_, md, mu))
    for t_ in f"""s_lshr_b32 s{sH[0]}, s{sW}, 1
    s_lshl_b32 s{sH[1]}, s{sH[0]}, 12
    s_lshl_b32 s{sH[0]}, s{sH[0]}, 11
    s_and_b32 s{sH[2]}, s{sW}, 1
    s_lshl_b32 s{sH[2]}, s{sH[2]}, 10
    s_add_u32 s{sH[1]}, s{sH[1]}, s{sH[2]}
    s_add_u32 s{sH[0]}, s{sH[0]}, s{sH[2]}
    s_add_u32 s{sH[3]}, s{sTB}, {40*12288}
    s_add_u32 s{sH[1]}, s{sH[1]}, s{sH[3]}
    s_add_u32 m0, s{sH[0]}, {LI}""".split('\n'): L(t_.strip())
    L(f'buffer_load_dwordx4 v{vD[0]}, {WS}, s{sH[1]} offen lds', ('left',))
    for t_ in f"""s_add_u32 s{sH[1]}, s{sH[3]}, s{sH[2]}
    s_add_u32 s{sH[1]}, s{sH[1]}, 8192
    s_add_u32 m0, s{sH[2]}, {LI + 4096}""".split('\n'): L(t_.strip())
    L(f'buffer_load_dwordx4 v{vD[0]}, {WS}, s{sH[1]} offen lds', ('left',))
    stp.stamp('issued')
    a(f"""
    v_lshrrev_b32 v{vG}, 4, v{vLane}
    v_and_b32 v{vI}, 15, v{vLane}
    s_mov_b32 s18, {XBYTES}
    s_mov_b32 s19, 0x00020000
    s_mov_b32 s{sFb}, 0
    s_mul_i32 s{sBeg}, s{sW}, {10*SL}
    s_add_u32 s{sBeg}, s{sBeg}, s{sTB}
    s_add_u32 s{sEnd}, s{sBeg}, {10*SL}
    s_mul_hi_u32 s{sT0}, s{sQb}, {(2**32+9)//10}
    s_mul_i32 s{sT0}, s{sT0}, 10
    s_sub_u32 s{sT0}, s{sQb}, s{sT0}          ; rot = qb % 10
    s_mul_i32 s{sT0}, s{sT0}, {SL}
    s_add_u32 s{sOff}, s{sBeg}, s{sT0}
    v_lshrrev_b32 v{vT[0]}, 3, v{vI}
    v_lshlrev_b32 v{vT[0]}, 10, v{vT[0]}
    v_and_b32 v{vT[1]}, 7, v{vI}
    v_lshl_add_u32 v{vT[0]}, v{vT[1]}, 7, v{vT[0]}
    v_bfe_u32 v{vT[1]}, v{vI}, 1, 2
    v_lshlrev_b32 v{vT[1]}, 1, v{vT[1]}          ; swz(i&7)
    v_xor_b32 v{vT[1]}, v{vT[1]}, v{vG}
    v_lshl_add_u32 v{vT[4]}, v{vT[1]}, 4, v{vT[0]}
    v_xor_b32 v{vT[5]}, 64, v{vT[4]}                   ; odd s
    v_add_u32 v{vK[0]}, s{sWB}, v{vT[4]}
    v_add_u32 v{vK[1]}, s{sWB}, v{vT[5]}
    v_lshrrev_b32 v{vT[0]}, 1, v{vG}
    v_lshlrev_b32 v{vT[0]}, 10, v{vT[0]}
    v_and_b32 v{vT[1]}, 1, v{vG}
    v_lshlrev_b32 v{vT[1]}, 2, v{vT[1]}
    v_lshrrev_b32 v{vT[2]}, 2, v{vI}
    v_add_u32 v{vT[1]}, v{vT[1]}, v{vT[2]}       ; r
    v_lshl_add_u32 v{vT[0]}, v{vT[1]}, 7, v{vT[0]}
    v_bfe_u32 v{vT[1]}, v{vT[1]}, 1, 2
    v_lshlrev_b32 v{vT[1]}, 1, v{vT[1]}          ; swz(r)
    v_bfe_u32 v{vT[2]}, v{vI}, 1, 1
    v_xor_b32 v{vT[1]}, v{vT[1]}, v{vT[2]}       ; swz ^ b
    v_and_b32 v{vT[2]}, 1, v{vI}
    v_lshl_add_u32 v{vT[0]}, v{vT[2]}, 3, v{vT[0]}
    v_add_u32 v{vT[0]}, s{sWB}, v{vT[0]}
    """)
    for jj in range(4):
        a(f"""
        s_xor_b32 s{sT0}, s{sW}, {jj}
        s_lshl_b32 s{sT0}, s{sT0}, 1
        v_xor_b32 v{vT[2]}, s{sT0}, v{vT[1]}
        v_lshl_add_u32 v{vV[jj]}, v{vT[2]}, 4, v{vT[0]}
        """)
    a(f"""
    v_mov_b32 v{vT[0]}, 0x3f803f80
    v_mov_b32 v{vT[1]}, 0x3e803e80
    v_accvgpr_write_b32 a{aOne}, v{vT[0]}
    v_accvgpr_write_b32 a{aOne+1}, v{vT[0]}
    v_accvgpr_write_b32 a{aOne+2}, v{vT[0]}
    v_accvgpr_write_b32 a{aOne+3}, v{vT[0]}
    v_accvgpr_write_b32 a{aQuart}, v{vT[1]}
    v_accvgpr_write_b32 a{aQuart+1}, v{vT[1]}
    v_lshrrev_b32 v{vT[0]}, 2, v{vI}
    v_cmp_eq_u32 vcc, v{vT[0]}, v{vG}
    v_and_b32 v{vT[1]}, 3, v{vI}
    v_mov_b32 v{vT[2]}, 0x3f80
    v_cndmask_b32 v{vT[2]}, 0, v{vT[2]}, vcc
    v_and_b32 v{vT[0]}, 1, v{vT[1]}
    v_lshlrev_b32 v{vT[0]}, 4, v{vT[0]}
    v_lshlrev_b32 v{vT[2]}, v{vT[0]}, v{vT[2]}        ; 0x3f80 << 16*(j&1)
    v_cmp_gt_u32 vcc, 2, v{vT[1]}
    s_lshr_b32 s{sT0}, s{sW}, 1
    s_lshl_b32 s{sT0}, s{sT0}, 10
    v_cndmask_b32 v{vT[0]}, 0, v{vT[2]}, vcc
    v_cndmask_b32 v{vT[1]}, v{vT[2]}, 0, vcc
    v_accvgpr_write_b32 a{aId}, v{vT[0]}
    v_accvgpr_write_b32 a{aId+1}, v{vT[1]}
    v_accvgpr_write_b32 a{aId+2}, v{vT[0]}
    v_accvgpr_write_b32 a{aId+3}, v{vT[1]}
    s_and_b32 s{sT1}, s{sW}, 1
    s_lshl_b32 s{sT1}, s{sT1}, 3
    s_add_u32 s{sT0}, s{sT0}, s{sT1}
    s_add_u32 s{sT1}, s{sT0}, {GI}
    v_add_u32 v{vT[0]}, s{sT1}, v{vD[0]}
    v_add_u32 v{vOa}, s{sT0}, v{vD[0]}
    v_add_u32 v{vT[1]}, {GI}, v{vD[0]}
    """)
    def dma_panel(j, p):
        sl = j % 3; out = []
        out.append((f's_add_u32 m0, s{sWB}, {sl*SL + p*4096}', (), ()))
        for kb in range(4):
            out.append((f'buffer_load_dwordx4 v{vD[p]}, {WS}, s{sOff} offen offset:{kb*1024} lds', (('K', j, p),), (('rdV', j - 3, p),)))
        if p == 2:
            out.append((f's_add_u32 s{sOff}, s{sOff}, {SL}', (), ()))
            out.append((f's_cmp_eq_u32 s{sOff}, s{sEnd}', (), ()))
            out.append((f's_cselect_b32 s{sOff}, s{sBeg}, s{sOff}', (), ()))
        return out
    for _ in range(npre): a(wq_all.pop(0)[0])
    a('s_barrier', muses=['hq'])
    stp.stamp('hqbar')
    vHq = vO
    for s in range(6):
        for qt in range(3):
            base = 12288 + qt * 6144
            a(f'ds_read_b128 {vr(vHq+(qt*6+s)*4,4)}, v{vT[4+(s&1)]} offset:{base+(s>>1)*2048}')
    def Greg(j, qt): return vS + (j * 3 + qt) * 4
    pend = wq_all + left_items + [it for p in range(3) for it in dma_panel(0, p)]
    def pop(q, n=1):
        while q and n > 0:
            t_, md, mu = q.pop(0); a(t_, mdefs=md, muses=mu)
            if not t_.startswith('s_'): n -= 1
        while q and q[0][0].startswith('s_') and 'm0' not in q[0][0] and ('cselect' in q[0][0] or 'cmp' in q[0][0] or f's{sOff}, s{sOff}' in q[0][0]):
            t_, md, mu = q.pop(0); a(t_, mdefs=md, muses=mu)
    pop(pend, max(0, 6 - npre))
    cnt = 0
    for s in range(6):
        for j in range(3):
            for qt in range(3):
                d = vr(Greg(j, qt), 4)
                a(f'v_mfma_f32_16x16x32_bf16 {d}, {ar(aW+(j*6+s)*4,4)}, {vr(vHq+(qt*6+s)*4,4)}, {"0" if s == 0 else d}')
                cnt += 1
                if qt == 0: pop(pend)
    for j in range(3):
        for qt in range(3):
            b = Greg(j, qt)
            a(f'v_cvt_pk_bf16_f32 v{b}, v{b}, v{b+1}')
            a(f'v_cvt_pk_bf16_f32 v{b+1}, v{b+2}, v{b+3}')
            a(f'ds_write_b64 v{vT[0]}, {vr(b,2)} offset:{(qt*6+2*j)*1024}', mdefs=['gimg'])
            pop(pend)
    stp.stamp('G')
    a('s_barrier', muses=['gimg', 'left'])
    a(f"""
    v_add_u32 v{vT[4]}, {LI}, v{vT[4]}
    v_add_u32 v{vT[5]}, {LI}, v{vT[5]}
    """)
    vLk = vO
    for s in range(6):
        for qt in range(3):
            a(f'ds_read_b128 {ar(aG+(qt*6+s)*4,4)}, v{vT[1]} offset:{(qt*6+s)*1024}', mdefs=['grd'])
        a(f'ds_read_b128 {vr(vLk+4*s,4)}, v{vT[4+(s&1)]} offset:{(s>>1)*2048}')
    pend = pend + [it for p in range(3) for it in dma_panel(1, p)]
    for s in range(6):
        for qt in range(3):
            d = vr(Sreg(1, 0, qt), 4)
            a(f'v_mfma_f32_16x16x32_bf16 {d}, {vr(vLk+4*s,4)}, {ar(aG+(qt*6+s)*4,4)}, {"0" if s == 0 else d}')
        pop(pend)
    a('s_barrier', muses=['grd'])
    stp.stamp('Sleft')
    m = [vT[0], vT[1], vT[2]]; m2 = [vT[3], vT[4], vT[5]]
    for qt in range(3):
        b = Sreg(1, 0, qt)
        a(f'v_max3_f32 v{m[qt]}, v{b}, v{b+1}, v{b+2}')
        a(f'v_max_f32 v{m[qt]}, v{m[qt]}, v{b+3}')
        a(f'v_mov_b32 v{m2[qt]}, v{m[qt]}')
    pop(pend)
    for qt in range(3): a(f'v_permlane16_swap_b32 v{m[qt]}, v{m2[qt]}')
    for qt in range(3):
        a(f'v_max_f32 v{m[qt]}, v{m[qt]}, v{m2[qt]}')
        a(f'v_mov_b32 v{m2[qt]}, v{m[qt]}')
    pop(pend)
    for qt in range(3): a(f'v_permlane32_swap_b32 v{m[qt]}, v{m2[qt]}')
    for qt in range(3):
        a(f'v_max_f32 v{m[qt]}, v{m[qt]}, v{m2[qt]}')
    for qt in range(3):
        for r in range(4):
            a(f'v_sub_f32 v{vNeg+4*qt+r}, 0, v{m[qt]}')
    stp.stamp('pre')
    groups = []
    for n in range(12): groups.append(('X', 0, n))
    for n in range(4): groups.append(('P', 0, n))
    for i in range(NSTEP):
        if i + 1 < NSTEP:
            for n in range(12): groups.append(('X', i + 1, n))
        for n in range(12): groups.append(('Y', i, n))
        groups.append(('L', i, 0))
    NG = len(groups)
    gidx = {g: k for k, g in enumerate(groups)}
    last_order = [1, 2, 3, 5, 6, 7, 9, 10, 11, 0, 4, 8]
    def yreg(j, n): return last_order[n] if j == NSTEP - 1 else n
    fbuf = {}; nbuf = [0]
    vLv = vT[5]
    def frag_reads(g):
        kind, j, n = g
        if kind == 'L' or (kind == 'P' and n == 3): return []
        b = aF + 4 * (nbuf[0] % NB); nbuf[0] += 1
        fbuf[g] = b
        sl = j % 3
        tag = ('F', g)
        if kind == 'X':
            s, kt = divmod(n, 2)
            return [(f'ds_read_b128 {ar(b,4)}, v{vK[s&1]} offset:{sl*SL+(s>>1)*4096+kt*2048}', (tag,), (('K', j, s >> 1),))]
        if kind == 'P':
            return [(f'ds_read_b64_tr_b16 {ar(b,2)}, v{vLv} offset:{n*2048}', (tag,), ())]
        R = yreg(j, n); p, jj = divmod(R, 4)
        return [(f'ds_read_b64_tr_b16 {ar(b+2*hf,2)}, v{vV[jj]} offset:{sl*SL+p*4096+hf*2048}', (tag, ('rdV', j, p)), (('K', j, p),)) for hf in range(2)]
    def mfmas(g):
        kind, j, n = g
        out = []
        for qt in range(3):
            if kind == 'X':
                s, kt = divmod(n, 2)
                d = vr(Sreg(j & 1, kt, qt), 4)
                c = vr(vNeg + 4 * qt, 4) if s == 0 else d
                out.append(f'v_mfma_f32_16x16x32_bf16 {d}, {ar(fbuf[g],4)}, {ar(aG+(qt*6+s)*4,4)}, {c}')
            elif kind == 'Y':
                R = yreg(j, n)
                d = vr(Oreg(R, qt), 4)
                c = '0' if (j == 0 and R % 4 != 0) else d
                out.append(f'v_mfma_f32_16x16x32_bf16 {d}, {ar(fbuf[g],4)}, {vr(Preg(j&1,qt),4)}, {c}')
            elif kind == 'L':
                d = ar(aL + 4 * qt, 4)
                out.append(f'v_mfma_f32_16x16x32_bf16 {d}, {ar(aOne,4)}, {vr(Preg(j&1,qt),4)}, {d}')
            elif n < 3:
                out.append(f'v_mfma_f32_16x16x16_bf16 {vr(Oreg(4*n,qt),4)}, {ar(fbuf[g],2)}, {vr(vPl+2*qt,2)}, 0')
            else:
                out.append(f'v_mfma_f32_16x16x16_bf16 {ar(aL+4*qt,4)}, {ar(aQuart,2)}, {vr(vPl+2*qt,2)}, 0')
        return out
    plan = [dict(exp=[], lo=[], mem=[]) for _ in range(NG + 8)]
    def put(k, cls, text, md=(), mu=()): plan[k][cls].append((text, md, mu))
    k0 = gidx[('X', 0, 0)]
    e = 0
    for qt in range(3):
        b = Sreg(1, 0, qt)
        for r in range(4): put(k0 + e // 2, 'lo', f'v_add_f32 v{b+r}, v{b+r}, v{vNeg+4*qt}'); e += 1
    e = 0
    for qt in range(3):
        b = Sreg(1, 0, qt)
        for r in range(4):
            put(k0 + 1 + (e * 7) // 12, 'exp', f'v_exp_f32 v{b+r}, v{b+r}'); e += 1
        put(k0 + 3 + (e * 7) // 12 - 1, 'lo', f'v_cvt_pk_bf16_f32 v{vPl+2*qt}, v{b}, v{b+1}')
        put(k0 + 3 + (e * 7) // 12 - 1, 'lo', f'v_cvt_pk_bf16_f32 v{vPl+2*qt+1}, v{b+2}, v{b+3}')
    put(k0 + 2, 'lo', f'v_subrev_u32 v{vLv}, s{sWB}, v{vV[0]}')
    put(k0 + 2, 'lo', f'v_add_u32 v{vLv}, {LI}, v{vLv}')
    for j in range(NSTEP):
        start = gidx[('X', j, 11)] + 1
        end = gidx[('Y', j, 0)]
        ng = end - start
        buf = j & 1
        items = [(kt, qt, r) for kt in range(2) for qt in range(3) for r in range(4)]
        span = max(ng - 2, 1)
        for e, (kt, qt, r) in enumerate(items):
            k = start + (e * span) // 24
            b = Sreg(buf, kt, qt)
            if 'noexp' not in dbg: put(k, 'exp', f'v_exp_f32 v{b+r}, v{b+r}')
            if r & 1 and 'nocvt' not in dbg:
                pz = Preg(buf, qt) + 2 * kt + (r >> 1)
                put(min(k + 1, end - 1), 'lo', f'v_cvt_pk_bf16_f32 v{pz}, v{b+r-1}, v{b+r}')
    def place_dma(items, ks):
        it = list(items)
        m0 = it.pop(0)
        for q in range(4):
            if q == 0: put(ks[0], 'mem', *m0)
            d = it.pop(0)
            if 'nodma' in dbg: continue
            put(ks[q], 'mem', *d)
        for x in it: put(ks[3] + 1, 'mem', *x)
    kk = k0
    rest = pend
    while rest:
        x = rest.pop(0); put(kk, 'mem', *x)
        if not x[0].startswith('s_'): kk += 1
    k2 = kk
    for p in range(3):
        place_dma(dma_panel(2, p), [k2 + 4 * p + q for q in range(4)])
    for j in range(3, NSTEP):
        b = j - 3
        y0 = gidx[('Y', b, 0)]
        base = y0 - 12
        nb = base + 25
        place_dma(dma_panel(j, 0), [base + 16, base + 18, base + 20, base + 22])
        place_dma(dma_panel(j, 1), [base + 24, nb + 1, nb + 3, nb + 5])
        place_dma(dma_panel(j, 2), [nb + 7, nb + 9, nb + 11, nb + 13])
    kw = gidx[('Y', 7, 2)]
    put(kw, 'mem', f's_mul_i32 s{sT0}, s{sW}, 18432')
    put(kw, 'mem', f's_add_u32 s{sT0}, s{sT0}, {WVOOFF}')
    put(kw, 'mem', f's_add_u32 s{sT1}, s{sT0}, 12288')
    for c in range(18):
        so = sT0 if c < 12 else sT1; cc = c % 12
        put(kw + 1 + (c * 3) // 2, 'mem', f'buffer_load_dwordx4 {ar(aW+c*4,4)}, v{vD[cc>>2]}, {WS}, s{so} offen offset:{(cc&3)*1024}')
    kx = gidx[('Y', 8, 0)]
    vSt = vS + 18
    x1 = [f's_mul_i32 s{sT2}, s{sQb}, 48',
          f'v_add_u32 v{vT[1]}, s{sT2}, v{vI}',
          f's_mul_i32 s{sX[0]}, s{sT}, 1296',
          f'v_add_u32 v{vT[2]}, s{sX[0]}, v{vT[1]}',
          f'v_lshlrev_b32 v{vT[3]}, 3, v{vT[2]}',
          f'v_mul_u32_u24 v{vX1a}, 384, v{vT[2]}',
          f's_mul_i32 s{sT2}, s{sW}, 96',
          f'v_lshlrev_b32 v{vT[2]}, 4, v{vG}',
          f'v_add3_u32 v{vX1a}, v{vX1a}, v{vT[2]}, s{sT2}',
          f'v_lshlrev_b32 v{vT[2]}, 3, v{vG}',
          f'v_sub_u32 v{vX1b}, v{vX1a}, v{vT[2]}']
    for n_, t_ in enumerate(x1): put(kx - 30 + n_ // 2, 'lo', t_)
    vHa = [vT[4], vT[5]]
    vKey = vT[1]
    def haddr(qt):
        out = []
        out.append(f'v_add_u32 v{vT[2]}, {16*qt}, v{vKey}')
        out.append(f'v_lshrrev_b32 v{vHa[0]}, 5, v{vT[2]}')
        out.append(f'v_mul_u32_u24 v{vHa[0]}, 12288, v{vHa[0]}')
        out.append(f'v_and_b32 v{vT[2]}, 31, v{vT[2]}')
        out.append(f'v_lshl_add_u32 v{vHa[0]}, v{vT[2]}, 7, v{vHa[0]}')
        out.append(f'v_bfe_u32 v{vT[2]}, v{vT[2]}, 1, 2')
        out.append(f'v_lshlrev_b32 v{vT[2]}, 1, v{vT[2]}')
        out.append(f's_mul_i32 s{sT2}, s{sW}, 6')
        out.append(f'v_add_u32 v{vT[0]}, s{sT2}, v{vG}')
        out.append(f'v_lshrrev_b32 v{vHa[1]}, 3, v{vT[0]}')
        out.append(f'v_lshl_add_u32 v{vHa[1]}, v{vHa[1]}, 12, v{vHa[0]}')
        out.append(f'v_and_b32 v{vT[0]}, 7, v{vT[0]}')
        out.append(f'v_xor_b32 v{vT[0]}, v{vT[0]}, v{vT[2]}')
        out.append(f'v_lshl_add_u32 v{vHa[1]}, v{vT[0]}, 4, v{vHa[1]}')
        out.append(('LOAD', f'buffer_load_dwordx4 {vr(vXr+qt*6,4)}, v{vHa[1]}, {WS}, s{sTB} offen'))
        out.append(f'v_lshrrev_b32 v{vT[0]}, 1, v{vG}')
        out.append(f'v_add3_u32 v{vT[0]}, v{vT[0]}, s{sT2}, 4')
        out.append(f'v_lshrrev_b32 v{vHa[1]}, 3, v{vT[0]}')
        out.append(f'v_lshl_add_u32 v{vHa[1]}, v{vHa[1]}, 12, v{vHa[0]}')
        out.append(f'v_and_b32 v{vT[0]}, 7, v{vT[0]}')
        out.append(f'v_xor_b32 v{vT[0]}, v{vT[0]}, v{vT[2]}')
        out.append(f'v_lshl_add_u32 v{vHa[1]}, v{vT[0]}, 4, v{vHa[1]}')
        out.append(f'v_and_b32 v{vT[0]}, 1, v{vG}')
        out.append(f'v_lshl_add_u32 v{vHa[1]}, v{vT[0]}, 3, v{vHa[1]}')
        out.append(('LOAD', f'buffer_load_dwordx2 {vr(vXr+qt*6+4,2)}, v{vHa[1]}, {WS}, s{sTB} offen'))
        out.append(('LOAD', f'buffer_load_dwordx2 {vr(vSt+2*qt,2)}, v{vT[3]}, {WS}, s{sX[1]} offen offset:{128*qt}'))
        return out
    vXr = vS
    put(kx - 1, 'lo', f's_mov_b32 s{sX[1]}, {STATOFF}')
    kk2 = kx
    for qt in range(3):
        for n_, t_ in enumerate(haddr(qt)):
            if isinstance(t_, tuple): put(kk2 + n_ // 7, 'lo', t_[1])
            else: put(kk2 + n_ // 7, 'lo', t_)
        kk2 += 4
    vPw = vT[0]
    ky = gidx[('Y', NSTEP - 1, 0)]
    put(ky - 1, 'lo', f'v_lshlrev_b32 v{vPw}, 3, v{vLane}')
    put(ky - 1, 'lo', f'v_add_u32 v{vPw}, s{sWB}, v{vPw}')
    for n in range(9):
        R = last_order[n]; p, jj = divmod(R, 4)
        for qt in range(3):
            o = Oreg(R, qt)
            put(ky + n + 2, 'lo', f'v_cvt_pk_bf16_f32 v{o}, v{o}, v{o+1}')
            put(ky + n + 2, 'lo', f'v_cvt_pk_bf16_f32 v{o+1}, v{o+2}, v{o+3}')
            put(ky + n + 2, 'lo', f'ds_write_b64 v{vPw}, {vr(o,2)} offset:{SL+((jj-1)*9+p*3+qt)*512}', ('part',), ())
    for k in range(D):
        for t_, md, mu in frag_reads(groups[k]): a(t_, mdefs=md, muses=mu)
    def emit(lst):
        for t_, md, mu in lst: a(t_, mdefs=md, muses=mu)
    for k, g in enumerate(groups):
        kind, j, n = g
        if kind == 'Y' and n == 0 and j in (0, 4, 8): stp.stamp(f'Y{j}')
        rd = frag_reads(groups[k + D]) if k + D < NG else []
        if 'nords' in dbg: rd = []
        mf = mfmas(g)
        pl = plan[k]
        ex, lo, mem = list(pl['exp']), list(pl['lo']), list(pl['mem'])
        emit(rd[:1])
        mu0 = []
        if 'pairwait' in dbg and k % 2 == 0 and k + 1 < NG and groups[k + 1] in fbuf: mu0 = [('F', groups[k + 1])]
        a(mf[0], muses=mu0)
        emit(ex[:1]); ex = ex[1:]
        if not pl['exp']:
            emit(lo[:2]); lo = lo[2:]
        a(mf[1])
        emit(rd[1:])
        emit(mem)
        emit(ex)
        emit(lo)
        a(mf[2])
    for k in range(NG, NG + 8):
        emit(plan[k]['exp']); emit(plan[k]['mem']); emit(plan[k]['lo'])
    stp.stamp('main')
    a(f"""
    v_lshlrev_b32 v{vT[1]}, 4, v{vI}
    s_lshl_b32 s{sT0}, s{sW}, 2
    s_add_u32 s{sT0}, s{sT0}, {LX}
    v_add_u32 v{vT[2]}, s{sT0}, v{vT[1]}
    v_add_u32 v{vT[1]}, {LX}, v{vT[1]}
    """)
    for qt in range(3):
        a(f'v_accvgpr_read_b32 v{vT[3]+qt}, a{aL+4*qt}')
    for qt in range(3):
        a(f'ds_write_b32 v{vT[2]}, v{vT[3]+qt} offset:{qt*256}', mdefs=['part'])
    vPr = [vT[3], vT[4], vT[5]]
    for jj in range(1, 4):
        a(f"""
        s_xor_b32 s{sT0}, s{sW}, {jj}
        s_mul_i32 s{sT0}, s{sT0}, {WREG}
        v_lshlrev_b32 v{vPr[jj-1]}, 3, v{vLane}
        v_add_u32 v{vPr[jj-1]}, s{sT0}, v{vPr[jj-1]}
        """)
    a('s_barrier', muses=['part'])
    stp.stamp('bar1')
    vLr = vP + 12
    for qt in range(3):
        a(f'ds_read_b128 {vr(vLr+4*qt,4)}, v{vT[1]} offset:{qt*256}')
    for qt in range(3):
        for p in range(3):
            for jj in range(1, 4):
                b = aPart + (qt * 3 + p) * 6 + 2 * (jj - 1)
                a(f'ds_read_b64 {ar(b,2)}, v{vPr[jj-1]} offset:{SL+((jj-1)*9+p*3+qt)*512}')
    vRinv = [vPl, vPl + 2, vPl + 4]
    for qt in range(3):
        b = vLr + 4 * qt
        a(f'v_add_f32 v{b}, v{b}, v{b+1}')
        a(f'v_add_f32 v{b+2}, v{b+2}, v{b+3}')
    for qt in range(3):
        b = vLr + 4 * qt
        a(f'v_add_f32 v{b}, v{b}, v{b+2}')
    for qt in range(3):
        a(f'v_rcp_f32 v{vRinv[qt]}, v{vLr+4*qt}')
    def Yreg(et, qt):
        k = et * 3 + qt
        return vS + 24 + 4 * k if k < 6 else vP + 4 * (k - 6)
    xinit = []
    for qt in range(3):
        x = vXr + qt * 6
        for k in range(6):
            et, r = (k >> 1, 2 * (k & 1))
            xinit.append(f'v_lshlrev_b32 v{Yreg(et,qt)+r}, 16, v{x+k}')
            xinit.append(f'v_and_b32 v{Yreg(et,qt)+r+1}, 0xffff0000, v{x+k}')
        for k in range(6):
            et, r = (k >> 1, 2 * (k & 1))
            y = vr(Yreg(et, qt) + r, 2)
            xinit.append(f'v_pk_fma_f32 {y}, {y}, {vr(vSt+2*qt,2)}, {vr(vSt+2*qt,2)} op_sel:[0,1,0] op_sel_hi:[1,1,0]')
    post = []
    nearly = 30
    def drain(lst, n):
        for _ in range(n):
            if lst:
                t_ = lst.pop(0)
                if t_.startswith('WRITE '): a(t_[6:], mdefs=['oimg'])
                else: a(t_)
    drain(xinit, nearly)
    for qt in range(3):
        for p in range(3):
            d = vr(Oreg(4 * p, qt), 4); b = aPart + (qt * 3 + p) * 6
            a(f'v_mfma_f32_16x16x32_bf16 {d}, {ar(aId,4)}, {ar(b,4)}, {d}')
            if post: drain(post, 2)
            else: drain(xinit, 2)
        for p in range(3):
            d = vr(Oreg(4 * p, qt), 4); b = aPart + (qt * 3 + p) * 6
            a(f'v_mfma_f32_16x16x16_bf16 {d}, {ar(aId,2)}, {ar(b+4,2)}, {d}')
            if post: drain(post, 2)
            else: drain(xinit, 2)
        md = []
        for p in range(3):
            o = Oreg(4 * p, qt)
            post.append(f'v_pk_mul_f32 {vr(o,2)}, {vr(o,2)}, {vr(vRinv[qt],2)} op_sel_hi:[1,0]')
            post.append(f'v_pk_mul_f32 {vr(o+2,2)}, {vr(o+2,2)}, {vr(vRinv[qt],2)} op_sel_hi:[1,0]')
        for p in range(3):
            o = Oreg(4 * p, qt)
            post.append(f'v_cvt_pk_bf16_f32 v{o}, v{o}, v{o+1}')
            post.append(f'v_cvt_pk_bf16_f32 v{o+1}, v{o+2}, v{o+3}')
            off = (6 * qt + 2 * p) * 1024 if qt < 2 else 36864 + 2 * p * 1024
            post.append(f'WRITE ds_write_b64 v{vOa}, {vr(o,2)} offset:{off}')
    rest = post
    drain(rest, len(rest))
    a(f's_movk_i32 s{sT0}, 6144')
    a(f's_movk_i32 s{sT1}, 12288')
    a('s_barrier', muses=['oimg'])
    stp.stamp('bar2')
    oreads_first = True
    for qt in range(3):
        for s in range(6):
            off = (6 * qt + s) * 1024 if qt < 2 else 36864 + s * 1024
            a(f'ds_read_b128 {ar(aG+(qt*6+s)*4,4)}, v{vD[0]} offset:{off}')
    fin = []
    for qt in range(3):
        cnt = 0
        for s in range(6):
            for et in range(3):
                d = vr(Yreg(et, qt), 4)
                if xinit and qt == 0 and s == 0 and et == 0: drain(xinit, len(xinit))
                a(f'v_mfma_f32_16x16x32_bf16 {d}, {ar(aW+(et*6+s)*4,4)}, {ar(aG+(qt*6+s)*4,4)}, {d}')
                cnt += 1
                if cnt >= 6 and fin: a(fin.pop(0))
        assert not fin
        x = vXr + qt * 6
        for k in range(6):
            et, r = (k >> 1, 2 * (k & 1))
            fin.append(f'v_cvt_pk_bf16_f32 v{x+k}, v{Yreg(et,qt)+r}, v{Yreg(et,qt)+r+1}')
        so = ['0', f's{sT0}', f's{sT1}'][qt]
        fin.append(f'buffer_store_dwordx4 {vr(x,4)}, v{vX1a}, {OUT}, {so} offen')
        fin.append(f'buffer_store_dwordx2 {vr(x+4,2)}, v{vX1b}, {OUT}, {so} offen offset:64')
    stp.stamp('oproj')
    while fin: a(fin.pop(0))
    stp.stamp('stores')
    if stamps:
        a('s_waitcnt vmcnt(0)')
        stp.stamp('drained')
    stp.dump(sW, WS, 4)
    a('s_endpgm')
    build_main.names = stp.names
    return finalize(a)

def build_B(name, stamps=False, dbg=(), **kw):
    s = f""".globl {name}
.p2align 8
.type {name},@function
{name}:
  s_cmp_ge_u32 s2, 216
  s_cbranch_scc1 LB_end
"""
    s += build_main(fallback=False, stamps=stamps, dbg=dbg, **kw)
    s += 'LB_end:\n  s_endpgm\n'
    return s
```

```python
import sys
sys.path.insert(0, 'gen')
from common import *
import gen_a
DESC = """.p2align 6
.amdhsa_kernel {name}
  .amdhsa_next_free_vgpr {vgpr}
  .amdhsa_next_free_sgpr {sgpr}
  .amdhsa_accum_offset {acc}
  .amdhsa_group_segment_fixed_size 0
  .amdhsa_kernarg_size 64
  .amdhsa_user_sgpr_count 2
  .amdhsa_user_sgpr_kernarg_segment_ptr 1
  .amdhsa_system_sgpr_workgroup_id_x 1
.end_amdhsa_kernel
"""
HEADER = """; TimeSformer block (temporal attention + spatial attention), gfx950, hand-written via a Python generator.
"""
def make(kernels, fn):
    s = HEADER
    for name, grid, lds, text, vgpr, acc in kernels:
        s += f'; @launch kernel={name} grid=({grid},1,1) block=(256,1,1) lds={lds}\n'
    s += '.amdgcn_target "amdgcn-amd-amdhsa--gfx950"\n.text\n'
    seen = []
    for name, grid, lds, text, vgpr, acc in kernels:
        if name in seen: continue
        seen.append(name)
        s += text
    s += '.section .rodata,"a"\n'
    seen = []
    for name, grid, lds, text, vgpr, acc in kernels:
        if name in seen: continue
        seen.append(name)
        s += DESC.format(name=name, vgpr=vgpr, sgpr=96, acc=acc)
    open(fn, 'w').write(s)
if __name__ == '__main__':
    NA = 'standalone__video_timesformer__vision_kernel'
    A = (NA, 252, gen_a.LDS_A, gen_a.build_A(NA), 512, 256)
    make([A], 'a_only.s')
    try:
        import gen_b
        NB = 'standalone__video_timesformer__vision_b_kernel'
        B = (NB, 216, gen_b.LDS_B, gen_b.build_B(NB), 512, 256)
        make([A, B], 'ab.s')
    except ImportError as e:
        print('no B yet', e)
    As = (NA, 252, gen_a.LDS_A, gen_a.build_A(NA, True), 512, 256)
    Bs = (NB, 216, gen_b.LDS_B, gen_b.build_B(NB, True), 512, 256)
    make([As, Bs], 'ab_st.s')
    import json
    json.dump([gen_a.build_main.names, gen_b.build_main.names], open('ab_st.json', 'w'))
    for nm, dbg in {'w9': ('wpre9',), 'w12': ('wpre12',), 'w18': ('wpre18',), 'w6': ('wpre6',)}.items():
        Bd = (NB, 216, gen_b.LDS_B, gen_b.build_B(NB, True, dbg), 512, 256)
        make([As, Bd], f'ab_st_{nm}.s')
        json.dump([gen_a.build_main.names, gen_b.build_main.names], open(f'ab_st_{nm}.json', 'w'))
    Ac = (NA, 252, gen_a.LDS_A, gen_a.build_A(NA, False, ('clk',)), 512, 256)
    Bc = (NB, 216, gen_b.LDS_B, gen_b.build_B(NB, False, ('clk',)), 512, 256)
    make([Ac, Bc], 'ab_clk.s')
    Bdl = (NB, 216, gen_b.LDS_B, gen_b.build_B(NB, False, ('delay', 'clk')), 512, 256)
    make([A, Bdl], 'ab_delay.s')
    EMPTY = lambda n: (n, 256, 0, f".globl {n}\n.p2align 8\n.type {n},@function\n{n}:\n  s_endpgm\n", 8, 8)
    make([A, B, EMPTY('e1_kernel')], 'ab_e1.s')
    make([A, B, EMPTY('e1_kernel'), EMPTY('e1_kernel'), EMPTY('e1_kernel')], 'ab_e3.s')
```

```python
T, N, C = 8, 1296, 192
XBYTES = T * N * C * 2
HOFF = 0
X1OFF = 0x400000
STATOFF = 0x400000
WQKOFF = 0x800000
WVOOFF = 0x820000
WSUSE = 0x1000000
STAMPOFF = 0x900000
TIMG = 41 * 12288
XROW = N * C * 2
SCALE_L2E = (C ** -0.5) * 1.4426950408889634
import struct
def f2u(f): return struct.unpack('<I', struct.pack('<f', f))[0]
def vr(b, n=1): return f'v{b}' if n == 1 else f'v[{b}:{b+n-1}]'
def ar(b, n=1): return f'a{b}' if n == 1 else f'a[{b}:{b+n-1}]'
def sr(b, n=1): return f's{b}' if n == 1 else f's[{b}:{b+n-1}]'
def srd(a, base, nbytes):
    a(f's_mov_b32 s{base+2}, {nbytes}\ns_mov_b32 s{base+3}, 0x00020000')

class Stamps:
    def __init__(self, a, enable, kernel_idx):
        self.a, self.en, self.k, self.n = a, enable, kernel_idx, 0
        self.names = []
    def start(self):
        if not self.en: return
        self.a('s_memrealtime s[56:57]')
        self.stamp('start')
    def stamp(self, name):
        if not self.en: return
        self.a(f's_memtime s[{60+2*self.n}:{61+2*self.n}]'); self.n += 1; self.names.append(name)
        assert self.n <= 16
    def dump(self, sW, srd, vtmp):
        if not self.en: return
        a = self.a
        a('s_memrealtime s[58:59]')
        a('s_waitcnt lgkmcnt(0)')
        a(f's_lshl_b32 s54, s2, 2\ns_add_u32 s54, s54, s{sW}\ns_lshl_b32 s54, s54, 7\ns_add_u32 s54, s54, {STAMPOFF + self.k*0x40000}')
        vals = ['s56', 's58'] + [f's{60+2*i}' for i in range(self.n)]
        a(f'v_mov_b32 v{vtmp}, 0')
        for i, v in enumerate(vals):
            a(f'v_mov_b32 v{vtmp+1}, {v}')
            a(f'buffer_store_dword v{vtmp+1}, v{vtmp}, {srd}, s54 offen offset:{4*i}')

def dbg_clock_start(a):
    a('s_memtime s[80:81]\ns_memrealtime s[82:83]')
def dbg_clock_end(a, sW):
    a(f"""
    s_memtime s[84:85]
    s_memrealtime s[86:87]
    s_load_dwordx2 s[88:89], s[0:1], 48
    s_waitcnt lgkmcnt(0)
    s_sub_u32 s84, s84, s80
    s_sub_u32 s86, s86, s82
    s_mov_b32 s90, 256
    s_mov_b32 s91, 0x00020000
    s_lshl_b32 s92, s2, 3
    s_cmp_lt_u32 s2, 8
    s_cselect_b32 s92, s92, 0x7ffff00
    s_cmp_eq_u32 s{sW}, 0
    s_cselect_b32 s92, s92, 0x7ffff00
    v_mov_b32 v4, s84
    v_mov_b32 v5, s86
    v_mov_b32 v6, s92
    s_nop 4
    buffer_store_dwordx2 v[4:5], v6, s[88:91], 0 offen
    """)
```

```python
from asmb import *
from common import *

NSL = 9
CH = 3072
WRING = NSL * CH
HL = 4 * WRING
SX = HL + 18432
ST = SX + 12288
XIBASE = ST + 1536
PX = XIBASE + 18432
LDS_A = PX + 1536

def build_main(stamps=False, dbg=()):
    a = Asm()
    stp = Stamps(a, stamps, 0)
    stp.start()
    if 'clk' in dbg: dbg_clock_start(a)
    sW, sN0, sT0, sT1, sT2, sWB = 24, 25, 26, 27, 28, 29
    sC = 30; sMask = 32
    sP1, sP2 = 34, 35
    sTen, sNl, sInv = 36, 37, 38
    sSo = 39; sW96 = 40; sK1152 = 41; sK384 = 42
    vLane, vG, vI = 1, 2, 3
    vT = [4, 5, 6, 7, 8]
    vWq = [9, 10, 11]; vWo = [12, 13, 14]; vTr = 15
    vHr = [20, 21]
    vXa = [22, 23, 24]; vHw = [25, 26, 27]
    vJunk = [28, 29]
    vXw = [30, 31, 32]; vOw = [33, 34, 35]; vSw = 36; vSr = 37; vStW = [38, 39]; vStR = 40
    vGw = [41, 42, 43]; vRoL = [44, 45, 46]; vRoG = [47, 48, 49]
    vX = 50
    vP = 50
    accA, accB = 68, 104
    vQ, vK, vV = 140, 158, 176
    vS = 194
    vSx = 140
    accC = 220
    vPA = [218, 219]
    vStG = 217
    aH = 0; aW = 72
    XI = ST + 1536
    def I(text, md=(), mu=()): return (text, md, mu)
    def emit(it): a(it[0], mdefs=it[1], muses=it[2])

    a(f"""
    s_load_dwordx2 s[8:9], s[0:1], 0
    s_load_dwordx2 s[12:13], s[0:1], 8
    s_load_dwordx2 s[16:17], s[0:1], 16
    s_load_dwordx2 s[20:21], s[0:1], 56
    v_lshrrev_b32 v{vT[0]}, 6, v0
    v_and_b32 v{vLane}, 63, v0
    v_readfirstlane_b32 s{sW}, v{vT[0]}
    v_lshrrev_b32 v{vG}, 4, v{vLane}
    v_and_b32 v{vI}, 15, v{vLane}
    s_mul_i32 s{sN0}, s2, 6
    s_mov_b32 s10, {XBYTES}
    s_mov_b32 s11, 0x00020000
    s_mov_b32 s14, {192*576*2}
    s_mov_b32 s15, 0x00020000
    s_mov_b32 s18, {192*192*2}
    s_mov_b32 s19, 0x00020000
    s_mov_b32 s22, {WSUSE}
    s_mov_b32 s23, 0x00020000
    s_mul_i32 s{sT1}, s{sW}, 12
    """)
    for j in range(3):
        a(f"""
        v_add_u32 v{vHw[j]}, s{sT1}, v{vG}
        v_add_u32 v{vHw[j]}, {4*j}, v{vHw[j]}
        v_and_b32 v{vT[4]}, 7, v{vHw[j]}
        v_mul_u32_u24 v{vT[4]}, 1296, v{vT[4]}
        v_lshrrev_b32 v{vXa[j]}, 3, v{vHw[j]}
        v_add3_u32 v{vXa[j]}, v{vXa[j]}, v{vT[4]}, s{sN0}
        v_mul_u32_u24 v{vXa[j]}, 384, v{vXa[j]}
        v_lshl_add_u32 v{vXa[j]}, v{vI}, 3, v{vXa[j]}
        """)
    a(f"""
    s_lshr_b32 s{sT0}, s2, 3
    s_mul_i32 s{sT0}, s{sT0}, 12288
    v_lshlrev_b32 v{vT[1]}, 7, v0
    v_add_u32 v{vT[1]}, s{sT0}, v{vT[1]}
    v_cmp_gt_u32 vcc, 96, v0
    v_mov_b32 v{vT[2]}, 0x7fffffff
    s_nop 0
    v_cndmask_b32 v{vT[1]}, v{vT[2]}, v{vT[1]}, vcc
    v_subrev_u32 v{vT[2]}, {192*576*2}, v{vT[1]}
    s_mul_i32 s{sWB}, s{sW}, {WRING}
    """)
    def pf():
        if 'nopf' in dbg: return
        a(f'buffer_load_dword v{vJunk[0]}, v{vT[1]}, s[12:15], 0 offen')
        a(f'buffer_load_dword v{vJunk[1]}, v{vT[2]}, s[16:19], 0 offen')
    if 'pffirst' in dbg: pf()
    for j in range(3):
        for m in range(3):
            a(f'buffer_load_dwordx2 {vr(vX+6*j+2*m,2)}, v{vXa[j]}, s[8:11], 0 offen offset:{128*m}')
    if 'pffirst' not in dbg: pf()
    def dma_items(c):
        part, ks = divmod(c, 6)
        sl = c % NSL; out = []
        so = (32 * ks) * 1152 + part * 384 if part < 3 else (32 * ks) * 384
        for k in range(3):
            grp = []
            if k == 0:
                grp.append(I(f's_add_u32 s{sSo}, s{sW96}, {so}'))
                grp.append(I(f's_add_u32 m0, s{sWB}, {sl*CH}'))
            if part < 3: grp.append(I(f'buffer_load_dwordx4 v{vWq[k]}, s[12:15], s{sSo} offen offset:{1024*k} lds', [('W', c)], [('rd', c - NSL)]))
            else: grp.append(I(f'buffer_load_dwordx4 v{vWo[k]}, s[16:19], s{sSo} offen offset:{1024*k} lds', [('W', c)], [('rd', c - NSL)]))
            out.append(grp)
        return out
    stp.stamp('issued')
    a_main = a
    a(f's_mul_i32 s{sW96}, s{sW}, 96\ns_movk_i32 s{sK1152}, 1152\ns_movk_i32 s{sK384}, 384')
    for k in range(3):
        a(f"""
        v_add_u32 v{vT[0]}, {64*k}, v{vLane}
        v_mul_u32_u24 v{vT[1]}, 43691, v{vT[0]}
        v_lshrrev_b32 v{vT[1]}, 18, v{vT[1]}          ; row = u / 6
        v_mul_u32_u24 v{vT[2]}, 6, v{vT[1]}
        v_sub_u32 v{vT[2]}, v{vT[0]}, v{vT[2]}        ; unit = u % 6
        v_lshlrev_b32 v{vT[2]}, 4, v{vT[2]}
        v_subrev_u32 v{vT[2]}, {1024*k}, v{vT[2]}
        v_mad_u32_u24 v{vWq[k]}, v{vT[1]}, s{sK1152}, v{vT[2]}
        v_mad_u32_u24 v{vWo[k]}, v{vT[1]}, s{sK384}, v{vT[2]}
        """.replace('OFF', ''))
    a = Asm()
    a(f's_mov_b32 s{sT2}, {XI}')
    for j in range(3):
        a(f"""
        v_and_b32 v{vT[0]}, 7, v{vHw[j]}              ; tk & 7
        v_lshrrev_b32 v{vT[1]}, 1, v{vI}
        v_xor_b32 v{vT[0]}, v{vT[0]}, v{vT[1]}
        v_lshlrev_b32 v{vT[0]}, 4, v{vT[0]}
        v_and_b32 v{vT[1]}, 1, v{vI}
        v_lshl_add_u32 v{vT[0]}, v{vT[1]}, 3, v{vT[0]}
        v_mul_u32_u24 v{vT[1]}, 384, v{vHw[j]}
        v_add3_u32 v{vXw[j]}, v{vT[0]}, v{vT[1]}, s{sT2}
        """)
        a(f"""
        v_lshrrev_b32 v{vT[2]}, 4, v{vHw[j]}         ; tt
        v_mul_u32_u24 v{vT[2]}, 6, v{vT[2]}
        v_lshrrev_b32 v{vT[4]}, 3, v{vI}              ; spar
        v_add_u32 v{vT[2]}, v{vT[2]}, v{vT[4]}
        v_lshlrev_b32 v{vT[2]}, 10, v{vT[2]}
        v_mul_u32_u24 v{vT[4]}, 12, v{vT[4]}
        v_and_b32 v{vT[3]}, 15, v{vHw[j]}             ; ii
        v_xor_b32 v{vT[3]}, v{vT[3]}, v{vT[4]}
        v_and_b32 v{vT[4]}, 3, v{vI}                  ; g'
        v_xor_b32 v{vT[3]}, v{vT[3]}, v{vT[4]}
        v_lshl_add_u32 v{vT[3]}, v{vT[4]}, 4, v{vT[3]}
        v_lshl_add_u32 v{vT[2]}, v{vT[3]}, 4, v{vT[2]}
        v_bfe_u32 v{vT[4]}, v{vI}, 2, 1
        v_lshl_add_u32 v{vT[2]}, v{vT[4]}, 3, v{vT[2]}
        v_add_u32 v{vHw[j]}, {HL}, v{vT[2]}
        """)
    a(f"""
    v_lshrrev_b32 v{vT[0]}, 2, v{vLane}            ; 4g + (i>>2)
    v_mul_u32_u24 v{vT[0]}, 96, v{vT[0]}
    v_and_b32 v{vT[1]}, 3, v{vLane}
    v_lshl_add_u32 v{vT[0]}, v{vT[1]}, 3, v{vT[0]}
    v_add_u32 v{vTr}, s{sWB}, v{vT[0]}
    """)
    a(f"""
    v_xor_b32 v{vT[0]}, v{vI}, v{vG}
    v_lshl_add_u32 v{vT[1]}, v{vG}, 4, v{vT[0]}
    v_lshlrev_b32 v{vHr[0]}, 4, v{vT[1]}
    v_add_u32 v{vHr[0]}, {HL}, v{vHr[0]}
    v_xor_b32 v{vHr[1]}, 192, v{vHr[0]}
    """)
    assert HL % 256 == 0
    for ct in range(3):
        a(f"""
        s_mul_i32 s{sT0}, s{sW}, 3
        s_add_u32 s{sT0}, s{sT0}, {ct}            ; a4
        s_lshr_b32 s{sT1}, s{sT0}, 1              ; s
        s_and_b32 s{sT0}, s{sT0}, 1               ; hi
        s_lshl_b32 s{sT0}, s{sT0}, 3
        s_and_b32 s{sT2}, s{sT1}, 1
        s_mul_i32 s{sT2}, s{sT2}, 192
        s_lshl_b32 s{sT1}, s{sT1}, 10
        s_add_u32 s{sT0}, s{sT0}, s{sT1}
        v_xor_b32 v{vOw[ct]}, s{sT2}, v{vHr[0]}
        v_add_u32 v{vOw[ct]}, s{sT0}, v{vOw[ct]}
        """)
    a(f"""
    s_mul_i32 s{sT0}, s{sW}, 3072
    s_add_u32 s{sT0}, s{sT0}, {SX}
    v_lshlrev_b32 v{vSw}, 4, v{vLane}
    v_add_u32 v{vSr}, {SX}, v{vSw}
    v_add_u32 v{vSw}, s{sT0}, v{vSw}
    s_mov_b32 s{sC}, {f2u(SCALE_L2E)}
    s_mov_b32 s{sInv}, {f2u(1.0/192)}
    v_lshrrev_b32 v{vT[0]}, 5, v{vLane}
    v_bfe_u32 v{vT[1]}, v{vLane}, 3, 1
    v_cmp_eq_u32 s[{sMask}:{sMask+1}], v{vT[0]}, v{vT[1]}
    v_lshrrev_b32 v{vT[0]}, 1, v{vG}
    v_mul_u32_u24 v{vT[0]}, 48, v{vT[0]}
    v_add_u32 v{vT[0]}, v{vT[0]}, v{vI}
    v_and_b32 v{vT[1]}, 1, v{vG}
    v_lshl_add_u32 v{vT[1]}, v{vT[1]}, 4, v{vT[0]}
    s_lshl_b32 s{sT0}, s{sW}, 2
    s_add_u32 s{sT0}, s{sT0}, {ST}
    v_lshlrev_b32 v{vT[1]}, 4, v{vT[1]}
    v_add_u32 v{vStW[0]}, s{sT0}, v{vT[1]}
    v_add_u32 v{vT[0]}, 32, v{vT[0]}
    v_lshlrev_b32 v{vT[0]}, 4, v{vT[0]}
    v_add_u32 v{vStW[1]}, s{sT0}, v{vT[0]}
    v_lshlrev_b32 v{vStR}, 4, v{vI}
    v_add_u32 v{vStR}, {ST}, v{vStR}
    """)
    for et in range(3):
        a(f"""
        s_mul_i32 s{sT0}, s{sW}, 6
        s_add_u32 s{sT0}, s{sT0}, {2*et}
        v_lshrrev_b32 v{vT[0]}, 1, v{vG}
        v_add_u32 v{vT[0]}, s{sT0}, v{vT[0]}        ; U
        v_and_b32 v{vT[1]}, 7, v{vT[0]}             ; u
        v_lshrrev_b32 v{vT[0]}, 3, v{vT[0]}         ; p
        v_and_b32 v{vT[2]}, 7, v{vI}
        v_xor_b32 v{vT[1]}, v{vT[1]}, v{vT[2]}
        v_lshlrev_b32 v{vT[1]}, 4, v{vT[1]}
        v_lshl_add_u32 v{vT[1]}, v{vT[0]}, 7, v{vT[1]}
        v_and_b32 v{vT[2]}, 1, v{vG}
        v_lshl_add_u32 v{vT[1]}, v{vT[2]}, 3, v{vT[1]}
        v_mul_u32_u24 v{vT[2]}, 384, v{vI}
        v_add_u32 v{vGw[et]}, v{vT[1]}, v{vT[2]}
        v_add_u32 v{vXa[et]}, {XI}, v{vGw[et]}
        """)
    a(f"""
    v_lshrrev_b32 v{vT[0]}, 3, v{vLane}       ; t
    v_and_b32 v{vT[1]}, 7, v{vLane}           ; slot
    """)
    for aa in range(2):
        if aa == 0: a(f's_mov_b32 s{sT0}, s{sW}')
        else: a(f's_and_b32 s{sT0}, s{sW}, 1\ns_add_u32 s{sT0}, s{sT0}, 4')
        a(f"""
        s_add_u32 s{sT1}, s{sT0}, s{sN0}          ; n
        s_lshr_b32 s{sT2}, s{sT1}, 1
        s_and_b32 s{sT2}, s{sT2}, 3
        s_lshl_b32 s{sT2}, s{sT2}, 1              ; swz(n&7)
        v_xor_b32 v{vT[2]}, s{sT2}, v{vT[1]}      ; u
        v_xor_b32 v{vT[2]}, v{vT[2]}, v{vT[0]}    ; u ^ t
        v_lshlrev_b32 v{vT[2]}, 4, v{vT[2]}
        s_mul_i32 s{sT0}, s{sT0}, 3072            ; nl*8*384
        v_mul_u32_u24 v{vT[3]}, 384, v{vT[0]}
        v_add3_u32 v{vRoL[aa]}, v{vT[2]}, v{vT[3]}, s{sT0}
        s_lshr_b32 s{sT2}, s{sT1}, 5
        s_mul_i32 s{sT2}, s{sT2}, 12288
        s_and_b32 s{sT1}, s{sT1}, 31
        s_lshl_b32 s{sT1}, s{sT1}, 7
        s_add_u32 s{sT2}, s{sT2}, s{sT1}
        v_mul_u32_u24 v{vT[3]}, {TIMG}, v{vT[0]}
        v_lshl_add_u32 v{vT[3]}, v{vT[1]}, 4, v{vT[3]}
        v_add_u32 v{vRoG[aa]}, s{sT2}, v{vT[3]}
        """)
    a(f's_movk_i32 s{sP1}, 4096\ns_movk_i32 s{sP2}, 8192')
    a(f"""
    s_lshl_b32 s{sT0}, s{sW}, 1
    s_add_u32 s{sT0}, s{sT0}, s{sN0}
    v_lshrrev_b32 v{vT[0]}, 3, v{vI}
    v_add_u32 v{vT[0]}, s{sT0}, v{vT[0]}      ; n
    v_and_b32 v{vT[1]}, 7, v{vI}
    v_mul_u32_u24 v{vT[1]}, 1296, v{vT[1]}
    v_add_u32 v{vT[0]}, v{vT[0]}, v{vT[1]}
    v_lshlrev_b32 v{vT[0]}, 3, v{vT[0]}
    v_add_u32 v{vT[0]}, {STATOFF}, v{vT[0]}
    s_cmp_eq_u32 s{sW}, 3
    s_cselect_b32 s{sT1}, 0, 1
    v_cmp_gt_u32 vcc, s{sT1}, v{vG}
    v_mov_b32 v{vT[1]}, 0x7fffffff
    s_nop 0
    v_cndmask_b32 v{vStG}, v{vT[1]}, v{vT[0]}, vcc
    """)
    a(f"""
    s_cmp_eq_u32 s{sW}, 3
    s_cselect_b32 s{sT0}, 0, s{sW}
    s_lshl_b32 s{sT1}, s{sT0}, 10
    v_add_u32 v{vSr}, s{sT1}, v{vSr}
    s_lshl_b32 s{sT1}, s{sT0}, 9
    s_add_u32 s{sT1}, s{sT1}, {PX}
    v_lshlrev_b32 v{vT[0]}, 3, v{vLane}
    v_add_u32 v{vPA[0]}, s{sT1}, v{vT[0]}
    v_add_u32 v{vPA[1]}, {PX}, v{vT[0]}
    """)
    addr_ins = a.ins
    a = a_main
    npre = 3 if 'pre3' in dbg else (6 if 'pre6' in dbg else 0)
    nln = 12
    for x in dbg:
        if x.startswith('ln'): nln = int(x[2:])
    dq = [g for c in range(24) for g in dma_items(c)]
    for _ in range(npre):
        for it in dq.pop(0): emit(it)
    a.ins.extend(addr_ins)
    stp.stamp('addr')
    ln = []
    vSum = [accA + 2 * j for j in range(3)]; vSq = [accA + 6 + 2 * j for j in range(3)]
    vF = accA + 12
    for j in range(3):
        for m in range(3):
            ln.append(I(f'ds_write_b64 v{vXw[j]}, {vr(vX+6*j+2*m,2)} offset:{128*m}', ['ximg']))
    ln.insert(0, I(f's_mov_b32 s{sT0}, 0x3f803f80'))
    for j in range(3):
        ln.append(I(f'v_mov_b32 v{vSum[j]}, 0')); ln.append(I(f'v_mov_b32 v{vSq[j]}, 0'))
    for k in range(6):
        for j in range(3):
            ln.append(I(f'v_dot2c_f32_bf16 v{vSum[j]}, s{sT0}, v{vX+6*j+k}'))
            ln.append(I(f'v_dot2c_f32_bf16 v{vSq[j]}, v{vX+6*j+k}, v{vX+6*j+k}'))
    for rot in (8, 4, 2, 1):
        for j in range(3):
            ln.append(I(f'v_add_f32_dpp v{vSum[j]}, v{vSum[j]}, v{vSum[j]} row_ror:{rot} row_mask:0xf bank_mask:0xf'))
            ln.append(I(f'v_add_f32_dpp v{vSq[j]}, v{vSq[j]}, v{vSq[j]} row_ror:{rot} row_mask:0xf bank_mask:0xf'))
    def ln_stats(S_, Q_, T_):
        out = []
        for s_, t_ in zip(S_, T_): out.append(I(f'v_mul_f32 v{s_}, s{sInv}, v{s_}'))
        for s_, t_ in zip(S_, T_): out.append(I(f'v_mul_f32 v{t_}, v{s_}, v{s_}'))
        for q_, t_ in zip(Q_, T_): out.append(I(f'v_fma_f32 v{q_}, v{q_}, s{sInv}, -v{t_}'))
        for q_ in Q_: out.append(I(f'v_max_f32 v{q_}, 0, v{q_}'))
        for q_ in Q_: out.append(I(f'v_add_f32 v{q_}, {f2u(1e-5)}, v{q_}'))
        for q_ in Q_: out.append(I(f'v_rsq_f32 v{q_}, v{q_}'))
        for s_, q_ in zip(S_, Q_): out.append(I(f'v_mul_f32_e64 v{s_}, -v{s_}, v{q_}'))
        return out
    ln += ln_stats(vSum, vSq, vT[0:3])
    for j in range(3):
        for k in range(6):
            ln.append(I(f'v_lshlrev_b32 v{vF+2*k}, 16, v{vX+6*j+k}'))
            ln.append(I(f'v_and_b32 v{vF+2*k+1}, 0xffff0000, v{vX+6*j+k}'))
        for k in range(6):
            ln.append(I(f'v_pk_fma_f32 {vr(vF+2*k,2)}, {vr(vF+2*k,2)}, {vr(vSq[j],2)}, {vr(vSum[j],2)} op_sel_hi:[1,0,0]'))
        for k in range(6):
            ln.append(I(f'v_cvt_pk_bf16_f32 v{vX+6*j+k}, v{vF+2*k}, v{vF+2*k+1}'))
        for m in range(3):
            ln.append(I(f'ds_write_b64 v{vHw[j]}, {vr(vX+6*j+2*m,2)} offset:{2048*m}', ['himg']))
    d1 = [dq.pop(0) for _ in range(nln)]
    step = (len(ln) - 12) // (len(d1) + 1)
    for n_, it in enumerate(ln):
        emit(it)
        if n_ == 1: stp.stamp('xarr')
        if n_ >= 12 and (n_ - 12) % step == step - 1 and d1:
            for x in d1.pop(0): emit(x)
    while d1:
        for x in d1.pop(0): emit(x)
    stp.stamp('ln1')
    a('s_barrier', muses=['himg', 'ximg'])
    stp.stamp('bar0')
    for s in range(6):
        for tt in range(3):
            a(f'ds_read_b128 {ar(aH+(tt*6+s)*4,4)}, v{vHr[s&1]} offset:{(tt*6+s)*1024}', mdefs=['hrd'])
    fcount = [0]
    issued = [24 * 3 - len(dq)]
    def trreads(c, ct):
        b = aW + 4 * (fcount[0] % 5); fcount[0] += 1
        sl = c % NSL
        return b, [I(f'ds_read_b64_tr_b16 {ar(b+2*hf,2)}, v{vTr} offset:{sl*CH+hf*1536+ct*32}', [('rd', c)], [('W', c)]) for hf in range(2)]
    def acc(base, ct, tt): return base + (ct * 3 + tt) * 4
    frs = [(c, ct) for c in range(24) for ct in range(3)]
    fbuf = {}
    nread = [0]
    def read_ahead(upto):
        while nread[0] <= min(upto, len(frs) - 1):
            c, ct = frs[nread[0]]
            if c >= limit[0]: break
            b, rd = trreads(c, ct)
            for it in rd: emit(it)
            fbuf[(c, ct)] = b; nread[0] += 1
    limit = [24]
    def stage(st, pre_issued=None, fill=(), mid=None, cinit=False):
        part, half = st >> 1, st & 1
        base = [accA, accB, accA, accC][part]
        fill = list(fill); nfill = len(fill); done = 0
        gap = 0
        for n in range(9):
            c = 3 * st + n // 3; ct = n % 3; ks = c % 6
            idx = c * 3 + ct
            read_ahead(idx + 3)
            if n == 7 and mid is not None:
                a('s_barrier', muses=list(mid[0]))
                for it in mid[1]: emit(it)
            b = fbuf[(c, ct)]
            for tt in range(3):
                d = vr(acc(base, ct, tt), 4)
                c_ = '0' if (ks == 0 and not cinit) else d
                hf_ = ar(aH + (tt * 6 + ks) * 4, 4)
                if part == 2: a(f'v_mfma_f32_16x16x32_bf16 {d}, {hf_}, {ar(b,4)}, {c_}')
                else: a(f'v_mfma_f32_16x16x32_bf16 {d}, {ar(b,4)}, {hf_}, {c_}')
                gap += 1
                want = (nfill * gap) // 27
                while done < want:
                    emit(fill[done]); done += 1
                if tt == 0 and dq:
                    cc = (24 * 3 - len(dq)) // 3
                    if cc - NSL < c:
                        for x in dq.pop(0): emit(x)
        while done < nfill:
            emit(fill[done]); done += 1
        return None
    def cvts(base, dst_of):
        out = []
        for tt in range(3):
            for ct in range(3):
                s_ = acc(base, ct, tt); d_ = dst_of(tt, ct)
                out.append(I(f'v_cvt_pk_bf16_f32 v{d_}, v{s_}, v{s_+1}'))
                out.append(I(f'v_cvt_pk_bf16_f32 v{d_+1}, v{s_+2}, v{s_+3}'))
        return out
    pre = stage(0)
    pre = stage(1, pre)
    stp.stamp('q')
    xr = [I(f'ds_read_b64 {vr(vV+(tt*3+et)*2,2)}, v{vXa[et]} offset:{tt*6144}') for tt in range(3) for et in range(3)]
    xu = []
    for tt in range(3):
        for et in range(3):
            b = acc(accC, et, tt); x_ = vV + (tt * 3 + et) * 2
            xu += [I(f'v_lshlrev_b32 v{b}, 16, v{x_}'), I(f'v_and_b32 v{b+1}, 0xffff0000, v{x_}'),
                   I(f'v_lshlrev_b32 v{b+2}, 16, v{x_+1}'), I(f'v_and_b32 v{b+3}, 0xffff0000, v{x_+1}')]
    pre = stage(2, pre, fill=xr + cvts(accA, lambda tt, ct: vQ + tt * 6 + ct * 2))
    pre = stage(3, pre, fill=xu)
    stp.stamp('k')
    f4 = [I('s_nop 0')] * 3 + cvts(accB, lambda tt, ct: vK + tt * 6 + ct * 2)
    for tt in range(3):
        f4.append(I(f'v_mfma_f32_16x16x32_bf16 {vr(vS+4*tt,4)}, {vr(vK+6*tt,4)}, {vr(vQ+6*tt,4)}, 0'))
    for tt in range(3):
        f4.append(I(f'v_mfma_f32_16x16x16_bf16 {vr(vS+4*tt,4)}, {vr(vK+6*tt+4,2)}, {vr(vQ+6*tt+4,2)}, {vr(vS+4*tt,4)}'))
    for tt in range(3):
        f4.append(I(f'ds_write_b128 v{vSw}, {vr(vS+4*tt,4)} offset:{tt*1024}', ['sx']))
    def squeeze(lst, frac):
        n = len(lst); tot = int(n / frac) + 1
        return lst + [None] * (tot - n)
    _emit = emit
    def emit(it):
        if it is not None: _emit(it)
    sreads = [I(f'ds_read_b128 {vr(vSx+w2*4,4)}, v{vSr} offset:{w2*3072}') for w2 in range(4)]
    pre = stage(4, pre, fill=squeeze(f4, 20 / 27), mid=(['sx'], sreads))
    f5 = []
    b = vSx
    f5.append(I(f'v_pk_add_f32 {vr(b,2)}, {vr(b,2)}, {vr(b+4,2)}'))
    f5.append(I(f'v_pk_add_f32 {vr(b+2,2)}, {vr(b+2,2)}, {vr(b+6,2)}'))
    f5.append(I(f'v_pk_add_f32 {vr(b+8,2)}, {vr(b+8,2)}, {vr(b+12,2)}'))
    f5.append(I(f'v_pk_add_f32 {vr(b+10,2)}, {vr(b+10,2)}, {vr(b+14,2)}'))
    f5.append(I(f'v_pk_add_f32 {vr(b,2)}, {vr(b,2)}, {vr(b+8,2)}'))
    f5.append(I(f'v_pk_add_f32 {vr(b+2,2)}, {vr(b+2,2)}, {vr(b+10,2)}'))
    m_, m2_ = b + 4, b + 5
    f5.append(I(f'v_max3_f32 v{m_}, v{b}, v{b+1}, v{b+2}'))
    f5.append(I(f'v_max_f32 v{m_}, v{m_}, v{b+3}'))
    f5.append(I(f'v_mov_b32 v{m2_}, v{m_}'))
    f5.append(None); f5.append(None)
    f5.append(I(f'v_permlane16_swap_b32 v{m_}, v{m2_}'))
    f5.append(I(f'v_max_f32 v{m_}, v{m_}, v{m2_}'))
    f5.append(I(f'v_mul_f32 v{m_}, s{sC}, v{m_}'))
    for r in range(4): f5.append(I(f'v_fma_f32 v{b+r}, v{b+r}, s{sC}, -v{m_}'))
    for r in range(4): f5.append(I(f'v_exp_f32 v{b+r}, v{b+r}'))
    f5.append(None)
    f5.append(I(f'v_add_f32 v{m_}, v{b}, v{b+1}')); f5.append(I(f'v_add_f32 v{m2_}, v{b+2}, v{b+3}'))
    f5.append(I(f'v_add_f32 v{m_}, v{m_}, v{m2_}'))
    f5.append(I(f'v_mov_b32 v{m2_}, v{m_}'))
    f5.append(None); f5.append(None)
    f5.append(I(f'v_permlane16_swap_b32 v{m_}, v{m2_}'))
    f5.append(I(f'v_add_f32 v{m_}, v{m_}, v{m2_}'))
    f5.append(I(f'v_rcp_f32 v{m_}, v{m_}'))
    f5.append(None)
    f5.append(I(f'v_cndmask_b32 v{m_}, 0, v{m_}, s[{sMask}:{sMask+1}]'))
    f5.append(I(f'v_pk_mul_f32 {vr(b,2)}, {vr(b,2)}, {vr(m_,2)} op_sel_hi:[1,0]'))
    f5.append(I(f'v_pk_mul_f32 {vr(b+2,2)}, {vr(b+2,2)}, {vr(m_,2)} op_sel_hi:[1,0]'))
    f5.append(I(f'v_cvt_pk_bf16_f32 v{b+6}, v{b}, v{b+1}'))
    f5.append(I(f'v_cvt_pk_bf16_f32 v{b+7}, v{b+2}, v{b+3}'))
    f5.append(I(f'ds_write_b64 v{vPA[0]}, {vr(b+6,2)}', ['px']))
    preads = [I(f'ds_read_b64 {vr(vP+2*tt,2)}, v{vPA[1]} offset:{tt*512}') for tt in range(3)]
    limit[0] = 18
    pre = stage(5, pre, fill=squeeze(f5, 20 / 27), mid=(['px'], preads))
    stp.stamp('v')
    cv = cvts(accA, lambda tt, ct: vV + (tt * 3 + ct) * 2)
    for it in cv: emit(it)
    for tt in range(3):
        for ct in range(3):
            a(f'v_mfma_f32_16x16x16_bf16 {vr(acc(accA,ct,tt),4)}, {vr(vV+(tt*3+ct)*2,2)}, {vr(vP+2*tt,2)}, 0')
    vO = vK
    for tt in range(3):
        for ct in range(3):
            s_ = acc(accA, ct, tt); d_ = vO + (tt * 3 + ct) * 2
            a(f'v_cvt_pk_bf16_f32 v{d_}, v{s_}, v{s_+1}')
            a(f'v_cvt_pk_bf16_f32 v{d_+1}, v{s_+2}, v{s_+3}')
            a(f'ds_write_b64 v{vOw[ct]}, {vr(d_,2)} offset:{tt*6144}', mdefs=['oimg'])
    while dq:
        for x in dq.pop(0): emit(x)
    a('s_barrier', muses=['oimg'])
    limit[0] = 24
    read_ahead(18 * 3 + 2)
    for s in range(6):
        for tt in range(3):
            a(f'ds_read_b128 {ar(aH+(tt*6+s)*4,4)}, v{vHr[s&1]} offset:{(tt*6+s)*1024}')
    stp.stamp('oimg')
    limit[0] = 24
    pre = stage(6, pre, cinit=True)
    pre = stage(7, pre, cinit=True)
    stp.stamp('oproj')
    sm = [vS + 0, vS + 2, vS + 4]; sq = [vS + 6, vS + 8, vS + 10]
    for tt in range(3):
        regs = [acc(accC, et, tt) + 2 * h for et in range(3) for h in range(2)]
        a(f'v_pk_add_f32 {vr(sm[tt],2)}, {vr(regs[0],2)}, {vr(regs[1],2)}')
        a(f'v_pk_mul_f32 {vr(sq[tt],2)}, {vr(regs[0],2)}, {vr(regs[0],2)}')
    for k in range(1, 6):
        for tt in range(3):
            regs = [acc(accC, et, tt) + 2 * h for et in range(3) for h in range(2)]
            if k >= 2: a(f'v_pk_add_f32 {vr(sm[tt],2)}, {vr(sm[tt],2)}, {vr(regs[k],2)}')
            a(f'v_pk_fma_f32 {vr(sq[tt],2)}, {vr(regs[k],2)}, {vr(regs[k],2)}, {vr(sq[tt],2)}')
    for tt in range(3):
        a(f'v_add_f32 v{sm[tt]}, v{sm[tt]}, v{sm[tt]+1}')
        a(f'v_add_f32 v{sq[tt]}, v{sq[tt]}, v{sq[tt]+1}')
    for tt in range(3): a(f'v_permlane32_swap_b32 v{sm[tt]}, v{sq[tt]}')
    for tt in range(3): a(f'v_add_f32 v{sm[tt]}, v{sm[tt]}, v{sq[tt]}')
    cp = vS + 1
    a(f'v_mov_b32 v{cp}, v{sm[2]}')
    a(f'v_permlane16_swap_b32 v{sm[0]}, v{sm[1]}')
    a(f'v_permlane16_swap_b32 v{sm[2]}, v{cp}')
    a(f'v_add_f32 v{sm[0]}, v{sm[0]}, v{sm[1]}')
    a(f'v_add_f32 v{sm[2]}, v{sm[2]}, v{cp}')
    a(f'ds_write_b32 v{vStW[0]}, v{sm[0]}', mdefs=['st'])
    a(f'ds_write_b32 v{vStW[1]}, v{sm[2]}', mdefs=['st'])
    a('s_barrier', muses=['st'])
    stp.stamp('stbar')
    vR = accA
    for stat in range(2):
        for tt in range(3):
            a(f'ds_read_b128 {vr(vR+(stat*3+tt)*4,4)}, v{vStR} offset:{(stat*48+16*tt)*16}')
    mu = [vS + 0, vS + 2, vS + 4]; rs = [vS + 6, vS + 8, vS + 10]
    for stat, dst in ((0, mu), (1, rs)):
        for tt in range(3):
            b = vR + (stat * 3 + tt) * 4
            a(f'v_pk_add_f32 {vr(b,2)}, {vr(b,2)}, {vr(b+2,2)}')
        for tt in range(3):
            b = vR + (stat * 3 + tt) * 4
            a(f'v_add_f32 v{dst[tt]}, v{b}, v{b+1}')
    vMS = vQ
    st_out = ln_stats(mu, rs, vT[0:3])
    for n_, it in enumerate(st_out):
        emit(it)
        if n_ == 2:
            for tt in range(3): a(f'v_mov_b32 v{vMS+2*tt}, v{mu[tt]}')
        if n_ == 14:
            for tt in range(3): a(f'v_mov_b32 v{vMS+2*tt+1}, v{rs[tt]}')
        if n_ == 17:
            for tt in range(3): a(f'v_mul_f32 v{vMS+2*tt+1}, v{vMS+2*tt+1}, v{rs[tt]}')
    a(f"""
    s_cmp_eq_u32 s{sW}, 1
    s_cselect_b64 vcc, -1, 0
    v_cndmask_b32 v{vMS}, v{vMS}, v{vMS+2}, vcc
    v_cndmask_b32 v{vMS+1}, v{vMS+1}, v{vMS+3}, vcc
    s_cmp_eq_u32 s{sW}, 2
    s_cselect_b64 vcc, -1, 0
    v_cndmask_b32 v{vMS}, v{vMS}, v{vMS+4}, vcc
    v_cndmask_b32 v{vMS+1}, v{vMS+1}, v{vMS+5}, vcc
    """)
    a(f'buffer_store_dwordx2 {vr(vMS,2)}, v{vStG}, s[20:23], 0 offen sc1')
    vPk2 = vV
    for tt in range(3):
        for et in range(3):
            b = acc(accC, et, tt); d_ = vPk2 + (tt * 3 + et) * 2
            a(f'v_pk_fma_f32 {vr(b,2)}, {vr(b,2)}, {vr(rs[tt],2)}, {vr(mu[tt],2)} op_sel_hi:[1,0,0]')
            a(f'v_pk_fma_f32 {vr(b+2,2)}, {vr(b+2,2)}, {vr(rs[tt],2)}, {vr(mu[tt],2)} op_sel_hi:[1,0,0]')
        for et in range(3):
            b = acc(accC, et, tt); d_ = vPk2 + (tt * 3 + et) * 2
            a(f'v_cvt_pk_bf16_f32 v{d_}, v{b}, v{b+1}')
            a(f'v_cvt_pk_bf16_f32 v{d_+1}, v{b+2}, v{b+3}')
            a(f'ds_write_b64 v{vGw[et]}, {vr(d_,2)} offset:{tt*6144}', mdefs=['stg'])
    a('s_barrier', muses=['stg'])
    stp.stamp('stg')
    vOut = accA
    for aa in range(2):
        for p in range(3):
            a(f'ds_read_b128 {vr(vOut+(aa*3+p)*4,4)}, v{vRoL[aa]} offset:{128*p}')
    for aa in range(2):
        if aa == 1:
            a(f's_cmp_ge_u32 s{sW}, 2')
            a('s_cbranch_scc1 LA_nost')
        for p in range(3):
            so = ['0', f's{sP1}', f's{sP2}'][p]
            a(f'buffer_store_dwordx4 {vr(vOut+(aa*3+p)*4,4)}, v{vRoG[aa]}, s[20:23], {so} offen sc1')
    a('LA_nost:')
    stp.stamp('stores')
    if stamps:
        a('s_waitcnt vmcnt(0)')
        stp.stamp('drained')
    if 'clk' in dbg:
        a('s_waitcnt vmcnt(0)')
        dbg_clock_end(a, sW)
    stp.dump(sW, 's[20:23]', 4)
    build_main.names = stp.names
    a('s_endpgm')
    return finalize(a)

def build_spare():
    a = Asm()
    SWQ, SWO, SWS = 12, 16, 20
    sW, sT0, sT1, sT2, sIdx, sCt, sS = 24, 26, 27, 28, 29, 30, 31
    vLane, vG, vI = 1, 2, 3
    vT = [4, 5, 6, 7, 8]
    vA0, vA1, vB = 9, 10, 11
    vAf = 16
    vBf = 64
    vRaw = 96
    vD = 150
    a(f"""
    s_load_dwordx2 s[12:13], s[0:1], 24
    s_load_dwordx2 s[16:17], s[0:1], 32
    s_load_dwordx2 s[20:21], s[0:1], 56
    v_lshrrev_b32 v{vT[0]}, 6, v0
    v_and_b32 v{vLane}, 63, v0
    v_readfirstlane_b32 s{sW}, v{vT[0]}
    v_lshrrev_b32 v{vG}, 4, v{vLane}
    v_and_b32 v{vI}, 15, v{vLane}
    s_mov_b32 s14, {192*576*2}
    s_mov_b32 s15, 0x00020000
    s_mov_b32 s18, {192*192*2}
    s_mov_b32 s19, 0x00020000
    s_mov_b32 s22, {WSUSE}
    s_mov_b32 s23, 0x00020000
    s_sub_u32 s{sIdx}, s2, 216
    s_lshl_b32 s{sIdx}, s{sIdx}, 2
    s_add_u32 s{sIdx}, s{sIdx}, s{sW}
    s_cmp_ge_u32 s{sIdx}, 72
    s_cbranch_scc1 LA_wvo
    """)
    head = finalize(a)
    a = Asm()
    a(f"""
    s_waitcnt lgkmcnt(0)
    s_mul_hi_u32 s{sCt}, s{sIdx}, {(2**32 + 5)//6}
    s_mul_i32 s{sT0}, s{sCt}, 6
    s_sub_u32 s{sS}, s{sIdx}, s{sT0}
    ; A rows: d = 32 s + 8 (i>>2) + 4 b + (i&3)
    v_lshrrev_b32 v{vT[0]}, 2, v{vI}
    v_lshlrev_b32 v{vT[0]}, 3, v{vT[0]}
    v_and_b32 v{vT[1]}, 3, v{vI}
    v_add_u32 v{vT[0]}, v{vT[0]}, v{vT[1]}         ; 8(i>>2)+(i&3)
    s_lshl_b32 s{sT0}, s{sS}, 5
    v_add_u32 v{vT[1]}, s{sT0}, v{vT[0]}
    v_mul_u32_u24 v{vA0}, 1152, v{vT[1]}
    v_lshl_add_u32 v{vA0}, v{vG}, 4, v{vA0}
    v_add_u32 v{vA1}, {4*1152}, v{vA0}
    s_lshr_b32 s{sT0}, s{sCt}, 1
    s_lshl_b32 s{sT0}, s{sT0}, 5
    s_and_b32 s{sT1}, s{sCt}, 1
    s_lshl_b32 s{sT1}, s{sT1}, 2
    s_add_u32 s{sT0}, s{sT0}, s{sT1}
    v_add_u32 v{vT[1]}, s{sT0}, v{vT[0]}
    v_mul_u32_u24 v{vB}, 1152, v{vT[1]}
    v_lshl_add_u32 v{vB}, v{vG}, 4, v{vB}
    """)
    for es in range(6):
        a(f'buffer_load_dwordx4 {vr(vAf+8*es,4)}, v{vA0}, s[12:15], 0 offen offset:{64*es}')
        a(f'buffer_load_dwordx4 {vr(vAf+8*es+4,4)}, v{vA1}, s[12:15], 0 offen offset:{64*es}')
        a(f'buffer_load_dwordx4 {vr(vBf+4*es,4)}, v{vB}, s[12:15], 0 offen offset:{384+64*es}')
    for es in range(6):
        for b in range(2):
            d = vr(vD + 4 * b, 4)
            a(f'v_mfma_f32_16x16x32_bf16 {d}, {vr(vAf+8*es+4*b,4)}, {vr(vBf+4*es,4)}, {"0" if es == 0 else d}')
    a(f's_mov_b32 s{sT0}, {f2u(SCALE_L2E)}')
    for r in range(8): a(f'v_mul_f32 v{vD+r}, s{sT0}, v{vD+r}')
    for r in range(4): a(f'v_cvt_pk_bf16_f32 v{vD+r}, v{vD+2*r}, v{vD+2*r+1}')
    a(f"""
    s_lshl_b32 s{sT0}, s{sIdx}, 10
    s_add_u32 s{sT0}, s{sT0}, {WQKOFF}
    v_lshlrev_b32 v{vT[0]}, 4, v{vLane}
    buffer_store_dwordx4 {vr(vD,4)}, v{vT[0]}, s[20:23], s{sT0} offen
    s_endpgm
    """)
    wqk = finalize(a)
    a = Asm()
    a(f"""
    s_waitcnt lgkmcnt(0)
    s_sub_u32 s{sIdx}, s{sIdx}, 72
    s_mul_hi_u32 s{sCt}, s{sIdx}, {(2**32 + 5)//6}
    s_mul_i32 s{sT0}, s{sCt}, 6
    s_sub_u32 s{sS}, s{sIdx}, s{sT0}
    s_lshl_b32 s{sT0}, s{sS}, 5
    v_add_u32 v{vT[0]}, s{sT0}, v{vI}
    v_mul_u32_u24 v{vA0}, 1152, v{vT[0]}
    v_lshl_add_u32 v{vA0}, v{vG}, 4, v{vA0}
    v_add_u32 v{vA1}, {16*1152}, v{vA0}
    s_mul_hi_u32 s{sT0}, s{sCt}, {(2**32 + 2)//3}      ; w'
    s_mul_i32 s{sT1}, s{sT0}, 3
    s_sub_u32 s{sT1}, s{sCt}, s{sT1}                    ; et
    s_mul_i32 s{sT0}, s{sT0}, 48
    s_cmp_eq_u32 s{sT1}, 2
    s_cselect_b32 s{sT2}, 2, 3
    s_cselect_b32 s{sT1}, 8, s{sT1}
    s_lshl_b32 s{sT1}, s{sT1}, 2
    s_add_u32 s{sT0}, s{sT0}, s{sT1}
    v_lshrrev_b32 v{vT[0]}, 2, v{vI}
    v_lshlrev_b32 v{vT[0]}, s{sT2}, v{vT[0]}
    v_and_b32 v{vT[1]}, 3, v{vI}
    v_add3_u32 v{vT[0]}, v{vT[0]}, v{vT[1]}, s{sT0}     ; e
    v_lshlrev_b32 v{vT[0]}, 1, v{vT[0]}
    v_mul_u32_u24 v{vT[1]}, {8*384}, v{vG}
    v_add_u32 v{vB}, v{vT[0]}, v{vT[1]}
    """)
    for cs in range(6):
        a(f'buffer_load_dwordx4 {vr(vAf+8*cs,4)}, v{vA0}, s[12:15], 0 offen offset:{768+64*cs}')
        a(f'buffer_load_dwordx4 {vr(vAf+8*cs+4,4)}, v{vA1}, s[12:15], 0 offen offset:{768+64*cs}')
    for cs in range(6):
        a(f's_mov_b32 s{sT2}, {cs*32*384}')
        for j in range(8):
            a(f'buffer_load_ushort v{vRaw+8*cs+j}, v{vB}, s[16:19], s{sT2} offen offset:{384*j}')
    for cs in range(6):
        for j in range(4):
            a(f'v_lshl_or_b32 v{vBf+4*cs+j}, v{vRaw+8*cs+2*j+1}, 16, v{vRaw+8*cs+2*j}')
        for b in range(2):
            d = vr(vD + 4 * b, 4)
            a(f'v_mfma_f32_16x16x32_bf16 {d}, {vr(vAf+8*cs+4*b,4)}, {vr(vBf+4*cs,4)}, {"0" if cs == 0 else d}')
    for r in range(4): a(f'v_cvt_pk_bf16_f32 v{vD+r}, v{vD+2*r}, v{vD+2*r+1}')
    a(f"""
    s_lshl_b32 s{sT0}, s{sIdx}, 10
    s_add_u32 s{sT0}, s{sT0}, {WVOOFF}
    v_lshlrev_b32 v{vT[0]}, 4, v{vLane}
    buffer_store_dwordx4 {vr(vD,4)}, v{vT[0]}, s[20:23], s{sT0} offen
    s_endpgm
    """)
    wvo = finalize(a)
    return head + wqk + 'LA_wvo:\n' + wvo

def build_A(name, stamps=False, dbg=()):
    s = f""".globl {name}
.p2align 8
.type {name},@function
{name}:
  s_cmp_ge_u32 s2, 252
  s_cbranch_scc1 LA_end
  s_cmp_ge_u32 s2, 216
  s_cbranch_scc1 LA_spare
"""
    s += build_main(stamps, dbg)
    s += 'LA_spare:\n' + build_spare()
    s += 'LA_end:\n  s_endpgm\n'
    return s
```

```python
from asmb import *
from common import *

WREG = 36864
SL = 12288
GI = 135168
LI = 153600
LX = 161792
LDS_B = 162560
NSTEP = 10

def build_main(fallback=True, stamps=False, dbg=(), D=3, NB=5):
    a = Asm()
    stp = Stamps(a, stamps, 1)
    stp.start()
    if 'clk' in dbg: dbg_clock_start(a)
    sW, sT, sQb, sT0, sT1, sT2, sWB = 24, 25, 26, 27, 28, 29, 30
    sOff, sTB, sEnd, sBeg = 31, 32, 33, 34
    sFb = 35
    sH = [36, 37, 38, 39]
    sX = [40, 41, 42]
    vLane, vG, vI = 1, 2, 3
    vT = [4, 5, 6, 7, 8, 9]
    vK = [10, 11]; vV = [12, 13, 14, 15]; vD = [16, 17, 18]
    vX1b = 19; vPl = 20; vX1a = 26; vOa = 27
    vJunk = 111
    vNeg = 28; vP = 40; vS = 64; vO = 112
    aG, aF, aL, aOne, aQuart, aId, aW, aPart = 0, 72, 104, 116, 120, 122, 128, 200
    assert NB <= 8
    def Sreg(buf, kt, qt): return vS + buf * 24 + (kt * 3 + qt) * 4
    def Preg(buf, qt): return vP + buf * 12 + qt * 4
    def Oreg(n, qt): return vO + (n * 3 + qt) * 4
    WS = 's[20:23]'; OUT = 's[16:19]'
    a(f"""
    s_load_dwordx2 s[20:21], s[0:1], 56
    s_load_dwordx2 s[16:17], s[0:1], 40
    v_lshrrev_b32 v{vT[0]}, 6, v0
    v_and_b32 v{vLane}, 63, v0
    v_readfirstlane_b32 s{sW}, v{vT[0]}
    v_lshlrev_b32 v{vD[0]}, 4, v{vLane}
    s_and_b32 s{sT}, s2, 7
    s_lshr_b32 s{sQb}, s2, 3
    s_mov_b32 s22, {WSUSE}
    s_mov_b32 s23, 0x00020000
    s_mul_i32 s{sTB}, s{sT}, {TIMG}
    s_mul_i32 s{sWB}, s{sW}, {WREG}
    """)
    for idx in range(2):
        g_, l_ = sH[2*idx], sH[2*idx+1]
        if idx == 0: a(f's_mov_b32 s{sT0}, s{sW}')
        else: a(f's_and_b32 s{sT0}, s{sW}, 1\ns_add_u32 s{sT0}, s{sT0}, 4')
        a(f"""
        s_mul_i32 s{sT1}, s{sQb}, 6
        s_add_u32 s{sT1}, s{sT1}, s{sT0}        ; kb
        s_lshr_b32 s{sT2}, s{sT1}, 2
        s_mul_i32 s{sT2}, s{sT2}, 12288
        s_and_b32 s{sT1}, s{sT1}, 3
        s_lshl_b32 s{sT1}, s{sT1}, 10
        s_add_u32 s{sT2}, s{sT2}, s{sT1}
        s_add_u32 s{g_}, s{sT2}, s{sTB}
        s_and_b32 s{sT1}, s{sT0}, 1
        s_lshl_b32 s{sT1}, s{sT1}, 10
        """)
        if idx == 0:
            a(f"""
            s_lshr_b32 s{sT2}, s{sT0}, 1
            s_mul_i32 s{sT2}, s{sT2}, 6144
            s_add_u32 s{sT1}, s{sT1}, s{sT2}
            s_add_u32 s{l_}, s{sT1}, 12288
            """)
        else:
            a(f's_add_u32 s{l_}, s{sT1}, {12288 + 2*6144}')
    a(f"""
    s_mul_i32 s{sT0}, s{sW}, 6144
    s_add_u32 s{sX[0]}, s{sT0}, {WQKOFF}
    s_add_u32 s{sX[1]}, s{sX[0]}, 24576
    s_add_u32 s{sX[2]}, s{sX[0]}, 49152
    v_add_u32 v{vD[1]}, 4096, v{vD[0]}
    v_add_u32 v{vD[2]}, 8192, v{vD[0]}
    """)
    for idx in range(2):
        g_, l_ = sH[2*idx], sH[2*idx+1]
        for p in range(3):
            a(f's_add_u32 m0, s{l_}, {p*2048}')
            a(f'buffer_load_dwordx4 v{vD[p]}, {WS}, s{g_} offen lds', mdefs=['hq'])
    def wqk_load(s, j): return (f'buffer_load_dwordx4 {ar(aW+(j*6+s)*4,4)}, v{vD[s>>2]}, {WS}, s{sX[j]} offen offset:{(s&3)*1024}', (), ())
    if 'nopf' not in dbg:
        a(f"""
        s_mul_i32 s{sT0}, s{sQb}, 22
        v_add_u32 v{vT[0]}, s{sT0}, v{vLane}
        v_cmp_gt_u32 vcc, 22, v{vLane}
        v_lshlrev_b32 v{vT[0]}, 7, v{vT[0]}
        s_lshr_b32 s{sT0}, s{sW}, 1
        s_lshl_b32 s{sT0}, s{sT0}, 17
        s_add_u32 s{sT0}, s{sT0}, {WQKOFF}
        v_mov_b32 v{vT[1]}, 0x7fffffff
        v_cndmask_b32 v{vT[0]}, v{vT[1]}, v{vT[0]}, vcc
        """)
        a(f'buffer_load_dword v{vJunk}, v{vT[0]}, {WS}, s{sT0} offen')
    npre = 12
    for x in dbg:
        if x.startswith('wpre'): npre = int(x[4:])
    wq_all = [wqk_load(s, j) for s in range(6) for j in range(3)]
    left_items = []
    def L(t_, md=(), mu=()): left_items.append((t_, md, mu))
    for t_ in f"""s_lshr_b32 s{sH[0]}, s{sW}, 1
    s_lshl_b32 s{sH[1]}, s{sH[0]}, 12
    s_lshl_b32 s{sH[0]}, s{sH[0]}, 11
    s_and_b32 s{sH[2]}, s{sW}, 1
    s_lshl_b32 s{sH[2]}, s{sH[2]}, 10
    s_add_u32 s{sH[1]}, s{sH[1]}, s{sH[2]}
    s_add_u32 s{sH[0]}, s{sH[0]}, s{sH[2]}
    s_add_u32 s{sH[3]}, s{sTB}, {40*12288}
    s_add_u32 s{sH[1]}, s{sH[1]}, s{sH[3]}
    s_add_u32 m0, s{sH[0]}, {LI}""".split('\n'): L(t_.strip())
    L(f'buffer_load_dwordx4 v{vD[0]}, {WS}, s{sH[1]} offen lds', ('left',))
    for t_ in f"""s_add_u32 s{sH[1]}, s{sH[3]}, s{sH[2]}
    s_add_u32 s{sH[1]}, s{sH[1]}, 8192
    s_add_u32 m0, s{sH[2]}, {LI + 4096}""".split('\n'): L(t_.strip())
    L(f'buffer_load_dwordx4 v{vD[0]}, {WS}, s{sH[1]} offen lds', ('left',))
    stp.stamp('issued')
    a(f"""
    v_lshrrev_b32 v{vG}, 4, v{vLane}
    v_and_b32 v{vI}, 15, v{vLane}
    s_mov_b32 s18, {XBYTES}
    s_mov_b32 s19, 0x00020000
    s_mov_b32 s{sFb}, 0
    s_mul_i32 s{sBeg}, s{sW}, {10*SL}
    s_add_u32 s{sBeg}, s{sBeg}, s{sTB}
    s_add_u32 s{sEnd}, s{sBeg}, {10*SL}
    s_mul_hi_u32 s{sT0}, s{sQb}, {(2**32+9)//10}
    s_mul_i32 s{sT0}, s{sT0}, 10
    s_sub_u32 s{sT0}, s{sQb}, s{sT0}          ; rot = qb % 10
    s_mul_i32 s{sT0}, s{sT0}, {SL}
    s_add_u32 s{sOff}, s{sBeg}, s{sT0}
    v_lshrrev_b32 v{vT[0]}, 3, v{vI}
    v_lshlrev_b32 v{vT[0]}, 10, v{vT[0]}
    v_and_b32 v{vT[1]}, 7, v{vI}
    v_lshl_add_u32 v{vT[0]}, v{vT[1]}, 7, v{vT[0]}
    v_bfe_u32 v{vT[1]}, v{vI}, 1, 2
    v_lshlrev_b32 v{vT[1]}, 1, v{vT[1]}          ; swz(i&7)
    v_xor_b32 v{vT[1]}, v{vT[1]}, v{vG}
    v_lshl_add_u32 v{vT[4]}, v{vT[1]}, 4, v{vT[0]}
    v_xor_b32 v{vT[5]}, 64, v{vT[4]}                   ; odd s
    v_add_u32 v{vK[0]}, s{sWB}, v{vT[4]}
    v_add_u32 v{vK[1]}, s{sWB}, v{vT[5]}
    v_lshrrev_b32 v{vT[0]}, 1, v{vG}
    v_lshlrev_b32 v{vT[0]}, 10, v{vT[0]}
    v_and_b32 v{vT[1]}, 1, v{vG}
    v_lshlrev_b32 v{vT[1]}, 2, v{vT[1]}
    v_lshrrev_b32 v{vT[2]}, 2, v{vI}
    v_add_u32 v{vT[1]}, v{vT[1]}, v{vT[2]}       ; r
    v_lshl_add_u32 v{vT[0]}, v{vT[1]}, 7, v{vT[0]}
    v_bfe_u32 v{vT[1]}, v{vT[1]}, 1, 2
    v_lshlrev_b32 v{vT[1]}, 1, v{vT[1]}          ; swz(r)
    v_bfe_u32 v{vT[2]}, v{vI}, 1, 1
    v_xor_b32 v{vT[1]}, v{vT[1]}, v{vT[2]}       ; swz ^ b
    v_and_b32 v{vT[2]}, 1, v{vI}
    v_lshl_add_u32 v{vT[0]}, v{vT[2]}, 3, v{vT[0]}
    v_add_u32 v{vT[0]}, s{sWB}, v{vT[0]}
    """)
    for jj in range(4):
        a(f"""
        s_xor_b32 s{sT0}, s{sW}, {jj}
        s_lshl_b32 s{sT0}, s{sT0}, 1
        v_xor_b32 v{vT[2]}, s{sT0}, v{vT[1]}
        v_lshl_add_u32 v{vV[jj]}, v{vT[2]}, 4, v{vT[0]}
        """)
    a(f"""
    v_mov_b32 v{vT[0]}, 0x3f803f80
    v_mov_b32 v{vT[1]}, 0x3e803e80
    v_accvgpr_write_b32 a{aOne}, v{vT[0]}
    v_accvgpr_write_b32 a{aOne+1}, v{vT[0]}
    v_accvgpr_write_b32 a{aOne+2}, v{vT[0]}
    v_accvgpr_write_b32 a{aOne+3}, v{vT[0]}
    v_accvgpr_write_b32 a{aQuart}, v{vT[1]}
    v_accvgpr_write_b32 a{aQuart+1}, v{vT[1]}
    v_lshrrev_b32 v{vT[0]}, 2, v{vI}
    v_cmp_eq_u32 vcc, v{vT[0]}, v{vG}
    v_and_b32 v{vT[1]}, 3, v{vI}
    v_mov_b32 v{vT[2]}, 0x3f80
    v_cndmask_b32 v{vT[2]}, 0, v{vT[2]}, vcc
    v_and_b32 v{vT[0]}, 1, v{vT[1]}
    v_lshlrev_b32 v{vT[0]}, 4, v{vT[0]}
    v_lshlrev_b32 v{vT[2]}, v{vT[0]}, v{vT[2]}        ; 0x3f80 << 16*(j&1)
    v_cmp_gt_u32 vcc, 2, v{vT[1]}
    s_lshr_b32 s{sT0}, s{sW}, 1
    s_lshl_b32 s{sT0}, s{sT0}, 10
    v_cndmask_b32 v{vT[0]}, 0, v{vT[2]}, vcc
    v_cndmask_b32 v{vT[1]}, v{vT[2]}, 0, vcc
    v_accvgpr_write_b32 a{aId}, v{vT[0]}
    v_accvgpr_write_b32 a{aId+1}, v{vT[1]}
    v_accvgpr_write_b32 a{aId+2}, v{vT[0]}
    v_accvgpr_write_b32 a{aId+3}, v{vT[1]}
    s_and_b32 s{sT1}, s{sW}, 1
    s_lshl_b32 s{sT1}, s{sT1}, 3
    s_add_u32 s{sT0}, s{sT0}, s{sT1}
    s_add_u32 s{sT1}, s{sT0}, {GI}
    v_add_u32 v{vT[0]}, s{sT1}, v{vD[0]}
    v_add_u32 v{vOa}, s{sT0}, v{vD[0]}
    v_add_u32 v{vT[1]}, {GI}, v{vD[0]}
    """)
    def dma_panel(j, p):
        sl = j % 3; out = []
        out.append((f's_add_u32 m0, s{sWB}, {sl*SL + p*4096}', (), ()))
        for kb in range(4):
            out.append((f'buffer_load_dwordx4 v{vD[p]}, {WS}, s{sOff} offen offset:{kb*1024} lds', (('K', j, p),), (('rdV', j - 3, p),)))
        if p == 2:
            out.append((f's_add_u32 s{sOff}, s{sOff}, {SL}', (), ()))
            out.append((f's_cmp_eq_u32 s{sOff}, s{sEnd}', (), ()))
            out.append((f's_cselect_b32 s{sOff}, s{sBeg}, s{sOff}', (), ()))
        return out
    for _ in range(npre): a(wq_all.pop(0)[0])
    a('s_barrier', muses=['hq'])
    stp.stamp('hqbar')
    vHq = vO
    for s in range(6):
        for qt in range(3):
            base = 12288 + qt * 6144
            a(f'ds_read_b128 {vr(vHq+(qt*6+s)*4,4)}, v{vT[4+(s&1)]} offset:{base+(s>>1)*2048}')
    def Greg(j, qt): return vS + (j * 3 + qt) * 4
    pend = wq_all + left_items + [it for p in range(3) for it in dma_panel(0, p)]
    def pop(q, n=1):
        while q and n > 0:
            t_, md, mu = q.pop(0); a(t_, mdefs=md, muses=mu)
            if not t_.startswith('s_'): n -= 1
        while q and q[0][0].startswith('s_') and 'm0' not in q[0][0] and ('cselect' in q[0][0] or 'cmp' in q[0][0] or f's{sOff}, s{sOff}' in q[0][0]):
            t_, md, mu = q.pop(0); a(t_, mdefs=md, muses=mu)
    pop(pend, max(0, 6 - npre))
    cnt = 0
    for s in range(6):
        for j in range(3):
            for qt in range(3):
                d = vr(Greg(j, qt), 4)
                a(f'v_mfma_f32_16x16x32_bf16 {d}, {ar(aW+(j*6+s)*4,4)}, {vr(vHq+(qt*6+s)*4,4)}, {"0" if s == 0 else d}')
                cnt += 1
                if qt == 0: pop(pend)
    for j in range(3):
        for qt in range(3):
            b = Greg(j, qt)
            a(f'v_cvt_pk_bf16_f32 v{b}, v{b}, v{b+1}')
            a(f'v_cvt_pk_bf16_f32 v{b+1}, v{b+2}, v{b+3}')
            a(f'ds_write_b64 v{vT[0]}, {vr(b,2)} offset:{(qt*6+2*j)*1024}', mdefs=['gimg'])
            pop(pend)
    stp.stamp('G')
    a('s_barrier', muses=['gimg', 'left'])
    a(f"""
    v_add_u32 v{vT[4]}, {LI}, v{vT[4]}
    v_add_u32 v{vT[5]}, {LI}, v{vT[5]}
    """)
    vLk = vO
    for s in range(6):
        for qt in range(3):
            a(f'ds_read_b128 {ar(aG+(qt*6+s)*4,4)}, v{vT[1]} offset:{(qt*6+s)*1024}', mdefs=['grd'])
        a(f'ds_read_b128 {vr(vLk+4*s,4)}, v{vT[4+(s&1)]} offset:{(s>>1)*2048}')
    pend = pend + [it for p in range(3) for it in dma_panel(1, p)]
    for s in range(6):
        for qt in range(3):
            d = vr(Sreg(1, 0, qt), 4)
            a(f'v_mfma_f32_16x16x32_bf16 {d}, {vr(vLk+4*s,4)}, {ar(aG+(qt*6+s)*4,4)}, {"0" if s == 0 else d}')
        pop(pend)
    a('s_barrier', muses=['grd'])
    stp.stamp('Sleft')
    m = [vT[0], vT[1], vT[2]]; m2 = [vT[3], vT[4], vT[5]]
    for qt in range(3):
        b = Sreg(1, 0, qt)
        a(f'v_max3_f32 v{m[qt]}, v{b}, v{b+1}, v{b+2}')
        a(f'v_max_f32 v{m[qt]}, v{m[qt]}, v{b+3}')
        a(f'v_mov_b32 v{m2[qt]}, v{m[qt]}')
    pop(pend)
    for qt in range(3): a(f'v_permlane16_swap_b32 v{m[qt]}, v{m2[qt]}')
    for qt in range(3):
        a(f'v_max_f32 v{m[qt]}, v{m[qt]}, v{m2[qt]}')
        a(f'v_mov_b32 v{m2[qt]}, v{m[qt]}')
    pop(pend)
    for qt in range(3): a(f'v_permlane32_swap_b32 v{m[qt]}, v{m2[qt]}')
    for qt in range(3):
        a(f'v_max_f32 v{m[qt]}, v{m[qt]}, v{m2[qt]}')
    for qt in range(3):
        for r in range(4):
            a(f'v_sub_f32 v{vNeg+4*qt+r}, 0, v{m[qt]}')
    stp.stamp('pre')
    groups = []
    for n in range(12): groups.append(('X', 0, n))
    for n in range(4): groups.append(('P', 0, n))
    for i in range(NSTEP):
        if i + 1 < NSTEP:
            for n in range(12): groups.append(('X', i + 1, n))
        for n in range(12): groups.append(('Y', i, n))
        groups.append(('L', i, 0))
    NG = len(groups)
    gidx = {g: k for k, g in enumerate(groups)}
    last_order = [1, 2, 3, 5, 6, 7, 9, 10, 11, 0, 4, 8]
    def yreg(j, n): return last_order[n] if j == NSTEP - 1 else n
    fbuf = {}; nbuf = [0]
    vLv = vT[5]
    def frag_reads(g):
        kind, j, n = g
        if kind == 'L' or (kind == 'P' and n == 3): return []
        b = aF + 4 * (nbuf[0] % NB); nbuf[0] += 1
        fbuf[g] = b
        sl = j % 3
        tag = ('F', g)
        if kind == 'X':
            s, kt = divmod(n, 2)
            return [(f'ds_read_b128 {ar(b,4)}, v{vK[s&1]} offset:{sl*SL+(s>>1)*4096+kt*2048}', (tag,), (('K', j, s >> 1),))]
        if kind == 'P':
            return [(f'ds_read_b64_tr_b16 {ar(b,2)}, v{vLv} offset:{n*2048}', (tag,), ())]
        R = yreg(j, n); p, jj = divmod(R, 4)
        return [(f'ds_read_b64_tr_b16 {ar(b+2*hf,2)}, v{vV[jj]} offset:{sl*SL+p*4096+hf*2048}', (tag, ('rdV', j, p)), (('K', j, p),)) for hf in range(2)]
    def mfmas(g):
        kind, j, n = g
        out = []
        for qt in range(3):
            if kind == 'X':
                s, kt = divmod(n, 2)
                d = vr(Sreg(j & 1, kt, qt), 4)
                c = vr(vNeg + 4 * qt, 4) if s == 0 else d
                out.append(f'v_mfma_f32_16x16x32_bf16 {d}, {ar(fbuf[g],4)}, {ar(aG+(qt*6+s)*4,4)}, {c}')
            elif kind == 'Y':
                R = yreg(j, n)
                d = vr(Oreg(R, qt), 4)
                c = '0' if (j == 0 and R % 4 != 0) else d
                out.append(f'v_mfma_f32_16x16x32_bf16 {d}, {ar(fbuf[g],4)}, {vr(Preg(j&1,qt),4)}, {c}')
            elif kind == 'L':
                d = ar(aL + 4 * qt, 4)
                out.append(f'v_mfma_f32_16x16x32_bf16 {d}, {ar(aOne,4)}, {vr(Preg(j&1,qt),4)}, {d}')
            elif n < 3:
                out.append(f'v_mfma_f32_16x16x16_bf16 {vr(Oreg(4*n,qt),4)}, {ar(fbuf[g],2)}, {vr(vPl+2*qt,2)}, 0')
            else:
                out.append(f'v_mfma_f32_16x16x16_bf16 {ar(aL+4*qt,4)}, {ar(aQuart,2)}, {vr(vPl+2*qt,2)}, 0')
        return out
    plan = [dict(exp=[], lo=[], mem=[]) for _ in range(NG + 8)]
    def put(k, cls, text, md=(), mu=()): plan[k][cls].append((text, md, mu))
    k0 = gidx[('X', 0, 0)]
    e = 0
    for qt in range(3):
        b = Sreg(1, 0, qt)
        for r in range(4): put(k0 + e // 2, 'lo', f'v_add_f32 v{b+r}, v{b+r}, v{vNeg+4*qt}'); e += 1
    e = 0
    for qt in range(3):
        b = Sreg(1, 0, qt)
        for r in range(4):
            put(k0 + 1 + (e * 7) // 12, 'exp', f'v_exp_f32 v{b+r}, v{b+r}'); e += 1
        put(k0 + 3 + (e * 7) // 12 - 1, 'lo', f'v_cvt_pk_bf16_f32 v{vPl+2*qt}, v{b}, v{b+1}')
        put(k0 + 3 + (e * 7) // 12 - 1, 'lo', f'v_cvt_pk_bf16_f32 v{vPl+2*qt+1}, v{b+2}, v{b+3}')
    put(k0 + 2, 'lo', f'v_subrev_u32 v{vLv}, s{sWB}, v{vV[0]}')
    put(k0 + 2, 'lo', f'v_add_u32 v{vLv}, {LI}, v{vLv}')
    for j in range(NSTEP):
        start = gidx[('X', j, 11)] + 1
        end = gidx[('Y', j, 0)]
        ng = end - start
        buf = j & 1
        items = [(kt, qt, r) for kt in range(2) for qt in range(3) for r in range(4)]
        span = max(ng - 2, 1)
        for e, (kt, qt, r) in enumerate(items):
            k = start + (e * span) // 24
            b = Sreg(buf, kt, qt)
            if 'noexp' not in dbg: put(k, 'exp', f'v_exp_f32 v{b+r}, v{b+r}')
            if r & 1 and 'nocvt' not in dbg:
                pz = Preg(buf, qt) + 2 * kt + (r >> 1)
                put(min(k + 1, end - 1), 'lo', f'v_cvt_pk_bf16_f32 v{pz}, v{b+r-1}, v{b+r}')
    def place_dma(items, ks):
        it = list(items)
        m0 = it.pop(0)
        for q in range(4):
            if q == 0: put(ks[0], 'mem', *m0)
            d = it.pop(0)
            if 'nodma' in dbg: continue
            put(ks[q], 'mem', *d)
        for x in it: put(ks[3] + 1, 'mem', *x)
    kk = k0
    rest = pend
    while rest:
        x = rest.pop(0); put(kk, 'mem', *x)
        if not x[0].startswith('s_'): kk += 1
    k2 = kk
    for p in range(3):
        place_dma(dma_panel(2, p), [k2 + 4 * p + q for q in range(4)])
    for j in range(3, NSTEP):
        b = j - 3
        y0 = gidx[('Y', b, 0)]
        base = y0 - 12
        nb = base + 25
        place_dma(dma_panel(j, 0), [base + 16, base + 18, base + 20, base + 22])
        place_dma(dma_panel(j, 1), [base + 24, nb + 1, nb + 3, nb + 5])
        place_dma(dma_panel(j, 2), [nb + 7, nb + 9, nb + 11, nb + 13])
    kw = gidx[('Y', 7, 2)]
    put(kw, 'mem', f's_mul_i32 s{sT0}, s{sW}, 18432')
    put(kw, 'mem', f's_add_u32 s{sT0}, s{sT0}, {WVOOFF}')
    put(kw, 'mem', f's_add_u32 s{sT1}, s{sT0}, 12288')
    for c in range(18):
        so = sT0 if c < 12 else sT1; cc = c % 12
        put(kw + 1 + (c * 3) // 2, 'mem', f'buffer_load_dwordx4 {ar(aW+c*4,4)}, v{vD[cc>>2]}, {WS}, s{so} offen offset:{(cc&3)*1024}')
    kx = gidx[('Y', 8, 0)]
    vSt = vS + 18
    x1 = [f's_mul_i32 s{sT2}, s{sQb}, 48',
          f'v_add_u32 v{vT[1]}, s{sT2}, v{vI}',
          f's_mul_i32 s{sX[0]}, s{sT}, 1296',
          f'v_add_u32 v{vT[2]}, s{sX[0]}, v{vT[1]}',
          f'v_lshlrev_b32 v{vT[3]}, 3, v{vT[2]}',
          f'v_mul_u32_u24 v{vX1a}, 384, v{vT[2]}',
          f's_mul_i32 s{sT2}, s{sW}, 96',
          f'v_lshlrev_b32 v{vT[2]}, 4, v{vG}',
          f'v_add3_u32 v{vX1a}, v{vX1a}, v{vT[2]}, s{sT2}',
          f'v_lshlrev_b32 v{vT[2]}, 3, v{vG}',
          f'v_sub_u32 v{vX1b}, v{vX1a}, v{vT[2]}']
    for n_, t_ in enumerate(x1): put(kx - 30 + n_ // 2, 'lo', t_)
    vHa = [vT[4], vT[5]]
    vKey = vT[1]
    def haddr(qt):
        out = []
        out.append(f'v_add_u32 v{vT[2]}, {16*qt}, v{vKey}')
        out.append(f'v_lshrrev_b32 v{vHa[0]}, 5, v{vT[2]}')
        out.append(f'v_mul_u32_u24 v{vHa[0]}, 12288, v{vHa[0]}')
        out.append(f'v_and_b32 v{vT[2]}, 31, v{vT[2]}')
        out.append(f'v_lshl_add_u32 v{vHa[0]}, v{vT[2]}, 7, v{vHa[0]}')
        out.append(f'v_bfe_u32 v{vT[2]}, v{vT[2]}, 1, 2')
        out.append(f'v_lshlrev_b32 v{vT[2]}, 1, v{vT[2]}')
        out.append(f's_mul_i32 s{sT2}, s{sW}, 6')
        out.append(f'v_add_u32 v{vT[0]}, s{sT2}, v{vG}')
        out.append(f'v_lshrrev_b32 v{vHa[1]}, 3, v{vT[0]}')
        out.append(f'v_lshl_add_u32 v{vHa[1]}, v{vHa[1]}, 12, v{vHa[0]}')
        out.append(f'v_and_b32 v{vT[0]}, 7, v{vT[0]}')
        out.append(f'v_xor_b32 v{vT[0]}, v{vT[0]}, v{vT[2]}')
        out.append(f'v_lshl_add_u32 v{vHa[1]}, v{vT[0]}, 4, v{vHa[1]}')
        out.append(('LOAD', f'buffer_load_dwordx4 {vr(vXr+qt*6,4)}, v{vHa[1]}, {WS}, s{sTB} offen'))
        out.append(f'v_lshrrev_b32 v{vT[0]}, 1, v{vG}')
        out.append(f'v_add3_u32 v{vT[0]}, v{vT[0]}, s{sT2}, 4')
        out.append(f'v_lshrrev_b32 v{vHa[1]}, 3, v{vT[0]}')
        out.append(f'v_lshl_add_u32 v{vHa[1]}, v{vHa[1]}, 12, v{vHa[0]}')
        out.append(f'v_and_b32 v{vT[0]}, 7, v{vT[0]}')
        out.append(f'v_xor_b32 v{vT[0]}, v{vT[0]}, v{vT[2]}')
        out.append(f'v_lshl_add_u32 v{vHa[1]}, v{vT[0]}, 4, v{vHa[1]}')
        out.append(f'v_and_b32 v{vT[0]}, 1, v{vG}')
        out.append(f'v_lshl_add_u32 v{vHa[1]}, v{vT[0]}, 3, v{vHa[1]}')
        out.append(('LOAD', f'buffer_load_dwordx2 {vr(vXr+qt*6+4,2)}, v{vHa[1]}, {WS}, s{sTB} offen'))
        out.append(('LOAD', f'buffer_load_dwordx2 {vr(vSt+2*qt,2)}, v{vT[3]}, {WS}, s{sX[1]} offen offset:{128*qt}'))
        return out
    vXr = vS
    put(kx - 1, 'lo', f's_mov_b32 s{sX[1]}, {STATOFF}')
    kk2 = kx
    for qt in range(3):
        for n_, t_ in enumerate(haddr(qt)):
            if isinstance(t_, tuple): put(kk2 + n_ // 7, 'lo', t_[1])
            else: put(kk2 + n_ // 7, 'lo', t_)
        kk2 += 4
    vPw = vT[0]
    ky = gidx[('Y', NSTEP - 1, 0)]
    put(ky - 1, 'lo', f'v_lshlrev_b32 v{vPw}, 3, v{vLane}')
    put(ky - 1, 'lo', f'v_add_u32 v{vPw}, s{sWB}, v{vPw}')
    for n in range(9):
        R = last_order[n]; p, jj = divmod(R, 4)
        for qt in range(3):
            o = Oreg(R, qt)
            put(ky + n + 2, 'lo', f'v_cvt_pk_bf16_f32 v{o}, v{o}, v{o+1}')
            put(ky + n + 2, 'lo', f'v_cvt_pk_bf16_f32 v{o+1}, v{o+2}, v{o+3}')
            put(ky + n + 2, 'lo', f'ds_write_b64 v{vPw}, {vr(o,2)} offset:{SL+((jj-1)*9+p*3+qt)*512}', ('part',), ())
    for k in range(D):
        for t_, md, mu in frag_reads(groups[k]): a(t_, mdefs=md, muses=mu)
    def emit(lst):
        for t_, md, mu in lst: a(t_, mdefs=md, muses=mu)
    for k, g in enumerate(groups):
        kind, j, n = g
        if kind == 'Y' and n == 0 and j in (0, 4, 8): stp.stamp(f'Y{j}')
        rd = frag_reads(groups[k + D]) if k + D < NG else []
        if 'nords' in dbg: rd = []
        mf = mfmas(g)
        pl = plan[k]
        ex, lo, mem = list(pl['exp']), list(pl['lo']), list(pl['mem'])
        emit(rd[:1])
        mu0 = []
        if 'pairwait' in dbg and k % 2 == 0 and k + 1 < NG and groups[k + 1] in fbuf: mu0 = [('F', groups[k + 1])]
        a(mf[0], muses=mu0)
        emit(ex[:1]); ex = ex[1:]
        if not pl['exp']:
            emit(lo[:2]); lo = lo[2:]
        a(mf[1])
        emit(rd[1:])
        emit(mem)
        emit(ex)
        emit(lo)
        a(mf[2])
    for k in range(NG, NG + 8):
        emit(plan[k]['exp']); emit(plan[k]['mem']); emit(plan[k]['lo'])
    stp.stamp('main')
    a(f"""
    v_lshlrev_b32 v{vT[1]}, 4, v{vI}
    s_lshl_b32 s{sT0}, s{sW}, 2
    s_add_u32 s{sT0}, s{sT0}, {LX}
    v_add_u32 v{vT[2]}, s{sT0}, v{vT[1]}
    v_add_u32 v{vT[1]}, {LX}, v{vT[1]}
    """)
    for qt in range(3):
        a(f'v_accvgpr_read_b32 v{vT[3]+qt}, a{aL+4*qt}')
    for qt in range(3):
        a(f'ds_write_b32 v{vT[2]}, v{vT[3]+qt} offset:{qt*256}', mdefs=['part'])
    vPr = [vT[3], vT[4], vT[5]]
    for jj in range(1, 4):
        a(f"""
        s_xor_b32 s{sT0}, s{sW}, {jj}
        s_mul_i32 s{sT0}, s{sT0}, {WREG}
        v_lshlrev_b32 v{vPr[jj-1]}, 3, v{vLane}
        v_add_u32 v{vPr[jj-1]}, s{sT0}, v{vPr[jj-1]}
        """)
    a('s_barrier', muses=['part'])
    stp.stamp('bar1')
    vLr = vP + 12
    for qt in range(3):
        a(f'ds_read_b128 {vr(vLr+4*qt,4)}, v{vT[1]} offset:{qt*256}')
    for qt in range(3):
        for p in range(3):
            for jj in range(1, 4):
                b = aPart + (qt * 3 + p) * 6 + 2 * (jj - 1)
                a(f'ds_read_b64 {ar(b,2)}, v{vPr[jj-1]} offset:{SL+((jj-1)*9+p*3+qt)*512}')
    vRinv = [vPl, vPl + 2, vPl + 4]
    for qt in range(3):
        b = vLr + 4 * qt
        a(f'v_add_f32 v{b}, v{b}, v{b+1}')
        a(f'v_add_f32 v{b+2}, v{b+2}, v{b+3}')
    for qt in range(3):
        b = vLr + 4 * qt
        a(f'v_add_f32 v{b}, v{b}, v{b+2}')
    for qt in range(3):
        a(f'v_rcp_f32 v{vRinv[qt]}, v{vLr+4*qt}')
    def Yreg(et, qt):
        k = et * 3 + qt
        return vS + 24 + 4 * k if k < 6 else vP + 4 * (k - 6)
    xinit = []
    for qt in range(3):
        x = vXr + qt * 6
        for k in range(6):
            et, r = (k >> 1, 2 * (k & 1))
            xinit.append(f'v_lshlrev_b32 v{Yreg(et,qt)+r}, 16, v{x+k}')
            xinit.append(f'v_and_b32 v{Yreg(et,qt)+r+1}, 0xffff0000, v{x+k}')
        for k in range(6):
            et, r = (k >> 1, 2 * (k & 1))
            y = vr(Yreg(et, qt) + r, 2)
            xinit.append(f'v_pk_fma_f32 {y}, {y}, {vr(vSt+2*qt,2)}, {vr(vSt+2*qt,2)} op_sel:[0,1,0] op_sel_hi:[1,1,0]')
    post = []
    nearly = 30
    def drain(lst, n):
        for _ in range(n):
            if lst:
                t_ = lst.pop(0)
                if t_.startswith('WRITE '): a(t_[6:], mdefs=['oimg'])
                else: a(t_)
    drain(xinit, nearly)
    for qt in range(3):
        for p in range(3):
            d = vr(Oreg(4 * p, qt), 4); b = aPart + (qt * 3 + p) * 6
            a(f'v_mfma_f32_16x16x32_bf16 {d}, {ar(aId,4)}, {ar(b,4)}, {d}')
            if post: drain(post, 2)
            else: drain(xinit, 2)
        for p in range(3):
            d = vr(Oreg(4 * p, qt), 4); b = aPart + (qt * 3 + p) * 6
            a(f'v_mfma_f32_16x16x16_bf16 {d}, {ar(aId,2)}, {ar(b+4,2)}, {d}')
            if post: drain(post, 2)
            else: drain(xinit, 2)
        md = []
        for p in range(3):
            o = Oreg(4 * p, qt)
            post.append(f'v_pk_mul_f32 {vr(o,2)}, {vr(o,2)}, {vr(vRinv[qt],2)} op_sel_hi:[1,0]')
            post.append(f'v_pk_mul_f32 {vr(o+2,2)}, {vr(o+2,2)}, {vr(vRinv[qt],2)} op_sel_hi:[1,0]')
        for p in range(3):
            o = Oreg(4 * p, qt)
            post.append(f'v_cvt_pk_bf16_f32 v{o}, v{o}, v{o+1}')
            post.append(f'v_cvt_pk_bf16_f32 v{o+1}, v{o+2}, v{o+3}')
            off = (6 * qt + 2 * p) * 1024 if qt < 2 else 36864 + 2 * p * 1024
            post.append(f'WRITE ds_write_b64 v{vOa}, {vr(o,2)} offset:{off}')
    rest = post
    drain(rest, len(rest))
    a(f's_movk_i32 s{sT0}, 6144')
    a(f's_movk_i32 s{sT1}, 12288')
    a('s_barrier', muses=['oimg'])
    stp.stamp('bar2')
    oreads_first = True
    for qt in range(3):
        for s in range(6):
            off = (6 * qt + s) * 1024 if qt < 2 else 36864 + s * 1024
            a(f'ds_read_b128 {ar(aG+(qt*6+s)*4,4)}, v{vD[0]} offset:{off}')
    fin = []
    for qt in range(3):
        cnt = 0
        for s in range(6):
            for et in range(3):
                d = vr(Yreg(et, qt), 4)
                if xinit and qt == 0 and s == 0 and et == 0: drain(xinit, len(xinit))
                a(f'v_mfma_f32_16x16x32_bf16 {d}, {ar(aW+(et*6+s)*4,4)}, {ar(aG+(qt*6+s)*4,4)}, {d}')
                cnt += 1
                if cnt >= 6 and fin: a(fin.pop(0))
        assert not fin
        x = vXr + qt * 6
        for k in range(6):
            et, r = (k >> 1, 2 * (k & 1))
            fin.append(f'v_cvt_pk_bf16_f32 v{x+k}, v{Yreg(et,qt)+r}, v{Yreg(et,qt)+r+1}')
        so = ['0', f's{sT0}', f's{sT1}'][qt]
        fin.append(f'buffer_store_dwordx4 {vr(x,4)}, v{vX1a}, {OUT}, {so} offen')
        fin.append(f'buffer_store_dwordx2 {vr(x+4,2)}, v{vX1b}, {OUT}, {so} offen offset:64')
    stp.stamp('oproj')
    while fin: a(fin.pop(0))
    stp.stamp('stores')
    if stamps:
        a('s_waitcnt vmcnt(0)')
        stp.stamp('drained')
    if 'clk' in dbg:
        a('s_waitcnt vmcnt(0)')
        dbg_clock_end(a, sW)
    stp.dump(sW, WS, 4)
    a('s_endpgm')
    build_main.names = stp.names
    return finalize(a)

def build_B(name, stamps=False, dbg=(), **kw):
    s = f""".globl {name}
.p2align 8
.type {name},@function
{name}:
  s_cmp_ge_u32 s2, 216
  s_cbranch_scc1 LB_end
"""
    if 'delay' in dbg:
        s += "  s_movk_i32 s4, 500\nLB_delay:\n  s_nop 7\n  s_sub_u32 s4, s4, 1\n  s_cmp_lg_u32 s4, 0\n  s_cbranch_scc1 LB_delay\n"
    s += build_main(fallback=False, stamps=stamps, dbg=dbg, **kw)
    s += 'LB_end:\n  s_endpgm\n'
    return s
```

```python
from asmb import *
from common import *

NSL = 9
CH = 3072
WRING = NSL * CH
HL = 4 * WRING
SX = HL + 18432
ST = SX + 12288
XIBASE = ST + 1536
PX = XIBASE + 18432
LDS_A = PX + 1536

def build_main(stamps=False, dbg=()):
    a = Asm()
    stp = Stamps(a, stamps, 0)
    stp.start()
    if 'clk' in dbg: dbg_clock_start(a)
    sW, sN0, sT0, sT1, sT2, sWB = 24, 25, 26, 27, 28, 29
    sC = 30; sMask = 32
    sP1, sP2 = 34, 35
    sTen, sNl, sInv = 36, 37, 38
    sSo = 39; sW96 = 40; sK1152 = 41; sK384 = 42
    vLane, vG, vI = 1, 2, 3
    vT = [4, 5, 6, 7, 8]
    vWq = [9, 10, 11]; vWo = [12, 13, 14]; vTr = 15
    vHr = [20, 21]
    vXa = [22, 23, 24]; vHw = [25, 26, 27]
    vJunk = [28, 29, 16]
    vXw = [30, 31, 32]; vOw = [33, 34, 35]; vSw = 36; vSr = 37; vStW = [38, 39]; vStR = 40
    vGw = [41, 42, 43]; vRoL = [44, 45, 46]; vRoG = [47, 48, 49]
    vX = 50
    vP = 50
    accA, accB = 68, 104
    vQ, vK, vV = 140, 158, 176
    vS = 194
    vSx = 140
    accC = 220
    vPA = [218, 219]
    vStG = 217
    aH = 0; aW = 72
    XI = ST + 1536
    def I(text, md=(), mu=()): return (text, md, mu)
    def emit(it): a(it[0], mdefs=it[1], muses=it[2])

    a(f"""
    s_load_dwordx2 s[8:9], s[0:1], 0
    s_load_dwordx2 s[12:13], s[0:1], 8
    s_load_dwordx2 s[16:17], s[0:1], 16
    s_load_dwordx2 s[20:21], s[0:1], 56
    v_lshrrev_b32 v{vT[0]}, 6, v0
    v_and_b32 v{vLane}, 63, v0
    v_readfirstlane_b32 s{sW}, v{vT[0]}
    v_lshrrev_b32 v{vG}, 4, v{vLane}
    v_and_b32 v{vI}, 15, v{vLane}
    s_mul_i32 s{sN0}, s2, 6
    s_mov_b32 s10, {XBYTES}
    s_mov_b32 s11, 0x00020000
    s_mov_b32 s14, {192*576*2}
    s_mov_b32 s15, 0x00020000
    s_mov_b32 s18, {192*192*2}
    s_mov_b32 s19, 0x00020000
    s_mov_b32 s22, {WSUSE}
    s_mov_b32 s23, 0x00020000
    s_mul_i32 s{sT1}, s{sW}, 12
    """)
    for j in range(3):
        a(f"""
        v_add_u32 v{vHw[j]}, s{sT1}, v{vG}
        v_add_u32 v{vHw[j]}, {4*j}, v{vHw[j]}
        v_and_b32 v{vT[4]}, 7, v{vHw[j]}
        v_mul_u32_u24 v{vT[4]}, 1296, v{vT[4]}
        v_lshrrev_b32 v{vXa[j]}, 3, v{vHw[j]}
        v_add3_u32 v{vXa[j]}, v{vXa[j]}, v{vT[4]}, s{sN0}
        v_mul_u32_u24 v{vXa[j]}, 384, v{vXa[j]}
        v_lshl_add_u32 v{vXa[j]}, v{vI}, 3, v{vXa[j]}
        """)
    a(f"""
    s_lshr_b32 s{sT0}, s2, 3
    s_mul_i32 s{sT0}, s{sT0}, 12288
    v_lshlrev_b32 v{vT[1]}, 7, v0
    v_add_u32 v{vT[1]}, s{sT0}, v{vT[1]}
    v_cmp_gt_u32 vcc, 96, v0
    v_mov_b32 v{vT[2]}, 0x7fffffff
    s_nop 0
    v_cndmask_b32 v{vT[1]}, v{vT[2]}, v{vT[1]}, vcc
    v_subrev_u32 v{vT[2]}, {192*576*2}, v{vT[1]}
    s_mul_i32 s{sWB}, s{sW}, {WRING}
    """)
    def code_pf():
        if 'nocpf' in dbg: return
        a(f"""
        s_lshr_b32 s{sT0}, s2, 3
        s_cmp_lt_u32 s{sT0}, 4
        s_cselect_b32 s{sT2}, s{sW}, 1
        s_cmp_eq_u32 s{sT2}, 0
        s_cselect_b32 s{sT2}, 7, 31
        s_getpc_b64 s[44:45]
        LA_pc:
        s_lshl_b32 s{sT0}, s{sT0}, 13
        v_lshlrev_b32 v{vT[0]}, 7, v{vLane}
        v_add_u32 v{vT[0]}, s{sT0}, v{vT[0]}
        v_min_u32 v{vT[0]}, LB_end-LA_pc, v{vT[0]}
        s_cmp_eq_u32 s{sT2}, 7
        s_cselect_b32 s{sT2}, -1, 0
        v_and_b32 v{vT[0]}, s{sT2}, v{vT[0]}
        """)
        a(f'global_load_dword v{vJunk[2]}, v{vT[0]}, s[44:45]')
    def pf():
        if 'nopf' in dbg: return
        a(f'buffer_load_dword v{vJunk[0]}, v{vT[1]}, s[12:15], 0 offen')
        a(f'buffer_load_dword v{vJunk[1]}, v{vT[2]}, s[16:19], 0 offen')
    if 'pffirst' in dbg: pf()
    for j in range(3):
        for m in range(3):
            a(f'buffer_load_dwordx2 {vr(vX+6*j+2*m,2)}, v{vXa[j]}, s[8:11], 0 offen offset:{128*m}')
    if 'pffirst' not in dbg: pf()
    code_pf()
    def dma_items(c):
        part, ks = divmod(c, 6)
        sl = c % NSL; out = []
        so = (32 * ks) * 1152 + part * 384 if part < 3 else (32 * ks) * 384
        for k in range(3):
            grp = []
            if k == 0:
                grp.append(I(f's_add_u32 s{sSo}, s{sW96}, {so}'))
                grp.append(I(f's_add_u32 m0, s{sWB}, {sl*CH}'))
            if part < 3: grp.append(I(f'buffer_load_dwordx4 v{vWq[k]}, s[12:15], s{sSo} offen offset:{1024*k} lds', [('W', c)], [('rd', c - NSL)]))
            else: grp.append(I(f'buffer_load_dwordx4 v{vWo[k]}, s[16:19], s{sSo} offen offset:{1024*k} lds', [('W', c)], [('rd', c - NSL)]))
            out.append(grp)
        return out
    stp.stamp('issued')
    a_main = a
    a(f's_mul_i32 s{sW96}, s{sW}, 96\ns_movk_i32 s{sK1152}, 1152\ns_movk_i32 s{sK384}, 384')
    for k in range(3):
        a(f"""
        v_add_u32 v{vT[0]}, {64*k}, v{vLane}
        v_mul_u32_u24 v{vT[1]}, 43691, v{vT[0]}
        v_lshrrev_b32 v{vT[1]}, 18, v{vT[1]}          ; row = u / 6
        v_mul_u32_u24 v{vT[2]}, 6, v{vT[1]}
        v_sub_u32 v{vT[2]}, v{vT[0]}, v{vT[2]}        ; unit = u % 6
        v_lshlrev_b32 v{vT[2]}, 4, v{vT[2]}
        v_subrev_u32 v{vT[2]}, {1024*k}, v{vT[2]}
        v_mad_u32_u24 v{vWq[k]}, v{vT[1]}, s{sK1152}, v{vT[2]}
        v_mad_u32_u24 v{vWo[k]}, v{vT[1]}, s{sK384}, v{vT[2]}
        """.replace('OFF', ''))
    a = Asm()
    a(f's_mov_b32 s{sT2}, {XI}')
    for j in range(3):
        a(f"""
        v_and_b32 v{vT[0]}, 7, v{vHw[j]}              ; tk & 7
        v_lshrrev_b32 v{vT[1]}, 1, v{vI}
        v_xor_b32 v{vT[0]}, v{vT[0]}, v{vT[1]}
        v_lshlrev_b32 v{vT[0]}, 4, v{vT[0]}
        v_and_b32 v{vT[1]}, 1, v{vI}
        v_lshl_add_u32 v{vT[0]}, v{vT[1]}, 3, v{vT[0]}
        v_mul_u32_u24 v{vT[1]}, 384, v{vHw[j]}
        v_add3_u32 v{vXw[j]}, v{vT[0]}, v{vT[1]}, s{sT2}
        """)
        a(f"""
        v_lshrrev_b32 v{vT[2]}, 4, v{vHw[j]}         ; tt
        v_mul_u32_u24 v{vT[2]}, 6, v{vT[2]}
        v_lshrrev_b32 v{vT[4]}, 3, v{vI}              ; spar
        v_add_u32 v{vT[2]}, v{vT[2]}, v{vT[4]}
        v_lshlrev_b32 v{vT[2]}, 10, v{vT[2]}
        v_mul_u32_u24 v{vT[4]}, 12, v{vT[4]}
        v_and_b32 v{vT[3]}, 15, v{vHw[j]}             ; ii
        v_xor_b32 v{vT[3]}, v{vT[3]}, v{vT[4]}
        v_and_b32 v{vT[4]}, 3, v{vI}                  ; g'
        v_xor_b32 v{vT[3]}, v{vT[3]}, v{vT[4]}
        v_lshl_add_u32 v{vT[3]}, v{vT[4]}, 4, v{vT[3]}
        v_lshl_add_u32 v{vT[2]}, v{vT[3]}, 4, v{vT[2]}
        v_bfe_u32 v{vT[4]}, v{vI}, 2, 1
        v_lshl_add_u32 v{vT[2]}, v{vT[4]}, 3, v{vT[2]}
        v_add_u32 v{vHw[j]}, {HL}, v{vT[2]}
        """)
    a(f"""
    v_lshrrev_b32 v{vT[0]}, 2, v{vLane}            ; 4g + (i>>2)
    v_mul_u32_u24 v{vT[0]}, 96, v{vT[0]}
    v_and_b32 v{vT[1]}, 3, v{vLane}
    v_lshl_add_u32 v{vT[0]}, v{vT[1]}, 3, v{vT[0]}
    v_add_u32 v{vTr}, s{sWB}, v{vT[0]}
    """)
    a(f"""
    v_xor_b32 v{vT[0]}, v{vI}, v{vG}
    v_lshl_add_u32 v{vT[1]}, v{vG}, 4, v{vT[0]}
    v_lshlrev_b32 v{vHr[0]}, 4, v{vT[1]}
    v_add_u32 v{vHr[0]}, {HL}, v{vHr[0]}
    v_xor_b32 v{vHr[1]}, 192, v{vHr[0]}
    """)
    assert HL % 256 == 0
    for ct in range(3):
        a(f"""
        s_mul_i32 s{sT0}, s{sW}, 3
        s_add_u32 s{sT0}, s{sT0}, {ct}            ; a4
        s_lshr_b32 s{sT1}, s{sT0}, 1              ; s
        s_and_b32 s{sT0}, s{sT0}, 1               ; hi
        s_lshl_b32 s{sT0}, s{sT0}, 3
        s_and_b32 s{sT2}, s{sT1}, 1
        s_mul_i32 s{sT2}, s{sT2}, 192
        s_lshl_b32 s{sT1}, s{sT1}, 10
        s_add_u32 s{sT0}, s{sT0}, s{sT1}
        v_xor_b32 v{vOw[ct]}, s{sT2}, v{vHr[0]}
        v_add_u32 v{vOw[ct]}, s{sT0}, v{vOw[ct]}
        """)
    a(f"""
    s_mul_i32 s{sT0}, s{sW}, 3072
    s_add_u32 s{sT0}, s{sT0}, {SX}
    v_lshlrev_b32 v{vSw}, 4, v{vLane}
    v_add_u32 v{vSr}, {SX}, v{vSw}
    v_add_u32 v{vSw}, s{sT0}, v{vSw}
    s_mov_b32 s{sC}, {f2u(SCALE_L2E)}
    s_mov_b32 s{sInv}, {f2u(1.0/192)}
    v_lshrrev_b32 v{vT[0]}, 5, v{vLane}
    v_bfe_u32 v{vT[1]}, v{vLane}, 3, 1
    v_cmp_eq_u32 s[{sMask}:{sMask+1}], v{vT[0]}, v{vT[1]}
    v_lshrrev_b32 v{vT[0]}, 1, v{vG}
    v_mul_u32_u24 v{vT[0]}, 48, v{vT[0]}
    v_add_u32 v{vT[0]}, v{vT[0]}, v{vI}
    v_and_b32 v{vT[1]}, 1, v{vG}
    v_lshl_add_u32 v{vT[1]}, v{vT[1]}, 4, v{vT[0]}
    s_lshl_b32 s{sT0}, s{sW}, 2
    s_add_u32 s{sT0}, s{sT0}, {ST}
    v_lshlrev_b32 v{vT[1]}, 4, v{vT[1]}
    v_add_u32 v{vStW[0]}, s{sT0}, v{vT[1]}
    v_add_u32 v{vT[0]}, 32, v{vT[0]}
    v_lshlrev_b32 v{vT[0]}, 4, v{vT[0]}
    v_add_u32 v{vStW[1]}, s{sT0}, v{vT[0]}
    v_lshlrev_b32 v{vStR}, 4, v{vI}
    v_add_u32 v{vStR}, {ST}, v{vStR}
    """)
    for et in range(3):
        a(f"""
        s_mul_i32 s{sT0}, s{sW}, 6
        s_add_u32 s{sT0}, s{sT0}, {2*et}
        v_lshrrev_b32 v{vT[0]}, 1, v{vG}
        v_add_u32 v{vT[0]}, s{sT0}, v{vT[0]}        ; U
        v_and_b32 v{vT[1]}, 7, v{vT[0]}             ; u
        v_lshrrev_b32 v{vT[0]}, 3, v{vT[0]}         ; p
        v_and_b32 v{vT[2]}, 7, v{vI}
        v_xor_b32 v{vT[1]}, v{vT[1]}, v{vT[2]}
        v_lshlrev_b32 v{vT[1]}, 4, v{vT[1]}
        v_lshl_add_u32 v{vT[1]}, v{vT[0]}, 7, v{vT[1]}
        v_and_b32 v{vT[2]}, 1, v{vG}
        v_lshl_add_u32 v{vT[1]}, v{vT[2]}, 3, v{vT[1]}
        v_mul_u32_u24 v{vT[2]}, 384, v{vI}
        v_add_u32 v{vGw[et]}, v{vT[1]}, v{vT[2]}
        v_add_u32 v{vXa[et]}, {XI}, v{vGw[et]}
        """)
    a(f"""
    v_lshrrev_b32 v{vT[0]}, 3, v{vLane}       ; t
    v_and_b32 v{vT[1]}, 7, v{vLane}           ; slot
    """)
    for aa in range(2):
        if aa == 0: a(f's_mov_b32 s{sT0}, s{sW}')
        else: a(f's_and_b32 s{sT0}, s{sW}, 1\ns_add_u32 s{sT0}, s{sT0}, 4')
        a(f"""
        s_add_u32 s{sT1}, s{sT0}, s{sN0}          ; n
        s_lshr_b32 s{sT2}, s{sT1}, 1
        s_and_b32 s{sT2}, s{sT2}, 3
        s_lshl_b32 s{sT2}, s{sT2}, 1              ; swz(n&7)
        v_xor_b32 v{vT[2]}, s{sT2}, v{vT[1]}      ; u
        v_xor_b32 v{vT[2]}, v{vT[2]}, v{vT[0]}    ; u ^ t
        v_lshlrev_b32 v{vT[2]}, 4, v{vT[2]}
        s_mul_i32 s{sT0}, s{sT0}, 3072            ; nl*8*384
        v_mul_u32_u24 v{vT[3]}, 384, v{vT[0]}
        v_add3_u32 v{vRoL[aa]}, v{vT[2]}, v{vT[3]}, s{sT0}
        s_lshr_b32 s{sT2}, s{sT1}, 5
        s_mul_i32 s{sT2}, s{sT2}, 12288
        s_and_b32 s{sT1}, s{sT1}, 31
        s_lshl_b32 s{sT1}, s{sT1}, 7
        s_add_u32 s{sT2}, s{sT2}, s{sT1}
        v_mul_u32_u24 v{vT[3]}, {TIMG}, v{vT[0]}
        v_lshl_add_u32 v{vT[3]}, v{vT[1]}, 4, v{vT[3]}
        v_add_u32 v{vRoG[aa]}, s{sT2}, v{vT[3]}
        """)
    a(f's_movk_i32 s{sP1}, 4096\ns_movk_i32 s{sP2}, 8192')
    a(f"""
    s_lshl_b32 s{sT0}, s{sW}, 1
    s_add_u32 s{sT0}, s{sT0}, s{sN0}
    v_lshrrev_b32 v{vT[0]}, 3, v{vI}
    v_add_u32 v{vT[0]}, s{sT0}, v{vT[0]}      ; n
    v_and_b32 v{vT[1]}, 7, v{vI}
    v_mul_u32_u24 v{vT[1]}, 1296, v{vT[1]}
    v_add_u32 v{vT[0]}, v{vT[0]}, v{vT[1]}
    v_lshlrev_b32 v{vT[0]}, 3, v{vT[0]}
    v_add_u32 v{vT[0]}, {STATOFF}, v{vT[0]}
    s_cmp_eq_u32 s{sW}, 3
    s_cselect_b32 s{sT1}, 0, 1
    v_cmp_gt_u32 vcc, s{sT1}, v{vG}
    v_mov_b32 v{vT[1]}, 0x7fffffff
    s_nop 0
    v_cndmask_b32 v{vStG}, v{vT[1]}, v{vT[0]}, vcc
    """)
    a(f"""
    s_cmp_eq_u32 s{sW}, 3
    s_cselect_b32 s{sT0}, 0, s{sW}
    s_lshl_b32 s{sT1}, s{sT0}, 10
    v_add_u32 v{vSr}, s{sT1}, v{vSr}
    s_lshl_b32 s{sT1}, s{sT0}, 9
    s_add_u32 s{sT1}, s{sT1}, {PX}
    v_lshlrev_b32 v{vT[0]}, 3, v{vLane}
    v_add_u32 v{vPA[0]}, s{sT1}, v{vT[0]}
    v_add_u32 v{vPA[1]}, {PX}, v{vT[0]}
    """)
    addr_ins = a.ins
    a = a_main
    npre = 3 if 'pre3' in dbg else (6 if 'pre6' in dbg else 0)
    nln = 12
    for x in dbg:
        if x.startswith('ln'): nln = int(x[2:])
    dq = [g for c in range(24) for g in dma_items(c)]
    for _ in range(npre):
        for it in dq.pop(0): emit(it)
    a.ins.extend(addr_ins)
    stp.stamp('addr')
    ln = []
    vSum = [accA + 2 * j for j in range(3)]; vSq = [accA + 6 + 2 * j for j in range(3)]
    vF = accA + 12
    for j in range(3):
        for m in range(3):
            ln.append(I(f'ds_write_b64 v{vXw[j]}, {vr(vX+6*j+2*m,2)} offset:{128*m}', ['ximg']))
    ln.insert(0, I(f's_mov_b32 s{sT0}, 0x3f803f80'))
    for j in range(3):
        ln.append(I(f'v_mov_b32 v{vSum[j]}, 0')); ln.append(I(f'v_mov_b32 v{vSq[j]}, 0'))
    for k in range(6):
        for j in range(3):
            ln.append(I(f'v_dot2c_f32_bf16 v{vSum[j]}, s{sT0}, v{vX+6*j+k}'))
            ln.append(I(f'v_dot2c_f32_bf16 v{vSq[j]}, v{vX+6*j+k}, v{vX+6*j+k}'))
    for rot in (8, 4, 2, 1):
        for j in range(3):
            ln.append(I(f'v_add_f32_dpp v{vSum[j]}, v{vSum[j]}, v{vSum[j]} row_ror:{rot} row_mask:0xf bank_mask:0xf'))
            ln.append(I(f'v_add_f32_dpp v{vSq[j]}, v{vSq[j]}, v{vSq[j]} row_ror:{rot} row_mask:0xf bank_mask:0xf'))
    def ln_stats(S_, Q_, T_):
        out = []
        for s_, t_ in zip(S_, T_): out.append(I(f'v_mul_f32 v{s_}, s{sInv}, v{s_}'))
        for s_, t_ in zip(S_, T_): out.append(I(f'v_mul_f32 v{t_}, v{s_}, v{s_}'))
        for q_, t_ in zip(Q_, T_): out.append(I(f'v_fma_f32 v{q_}, v{q_}, s{sInv}, -v{t_}'))
        for q_ in Q_: out.append(I(f'v_max_f32 v{q_}, 0, v{q_}'))
        for q_ in Q_: out.append(I(f'v_add_f32 v{q_}, {f2u(1e-5)}, v{q_}'))
        for q_ in Q_: out.append(I(f'v_rsq_f32 v{q_}, v{q_}'))
        for s_, q_ in zip(S_, Q_): out.append(I(f'v_mul_f32_e64 v{s_}, -v{s_}, v{q_}'))
        return out
    ln += ln_stats(vSum, vSq, vT[0:3])
    for j in range(3):
        for k in range(6):
            ln.append(I(f'v_lshlrev_b32 v{vF+2*k}, 16, v{vX+6*j+k}'))
            ln.append(I(f'v_and_b32 v{vF+2*k+1}, 0xffff0000, v{vX+6*j+k}'))
        for k in range(6):
            ln.append(I(f'v_pk_fma_f32 {vr(vF+2*k,2)}, {vr(vF+2*k,2)}, {vr(vSq[j],2)}, {vr(vSum[j],2)} op_sel_hi:[1,0,0]'))
        for k in range(6):
            ln.append(I(f'v_cvt_pk_bf16_f32 v{vX+6*j+k}, v{vF+2*k}, v{vF+2*k+1}'))
        for m in range(3):
            ln.append(I(f'ds_write_b64 v{vHw[j]}, {vr(vX+6*j+2*m,2)} offset:{2048*m}', ['himg']))
    d1 = [dq.pop(0) for _ in range(nln)]
    step = (len(ln) - 12) // (len(d1) + 1)
    for n_, it in enumerate(ln):
        emit(it)
        if n_ == 1: stp.stamp('xarr')
        if n_ >= 12 and (n_ - 12) % step == step - 1 and d1:
            for x in d1.pop(0): emit(x)
    while d1:
        for x in d1.pop(0): emit(x)
    stp.stamp('ln1')
    a('s_barrier', muses=['himg', 'ximg'])
    stp.stamp('bar0')
    for s in range(6):
        for tt in range(3):
            a(f'ds_read_b128 {ar(aH+(tt*6+s)*4,4)}, v{vHr[s&1]} offset:{(tt*6+s)*1024}', mdefs=['hrd'])
    fcount = [0]
    issued = [24 * 3 - len(dq)]
    def trreads(c, ct):
        b = aW + 4 * (fcount[0] % 5); fcount[0] += 1
        sl = c % NSL
        return b, [I(f'ds_read_b64_tr_b16 {ar(b+2*hf,2)}, v{vTr} offset:{sl*CH+hf*1536+ct*32}', [('rd', c)], [('W', c)]) for hf in range(2)]
    def acc(base, ct, tt): return base + (ct * 3 + tt) * 4
    frs = [(c, ct) for c in range(24) for ct in range(3)]
    fbuf = {}
    nread = [0]
    def read_ahead(upto):
        while nread[0] <= min(upto, len(frs) - 1):
            c, ct = frs[nread[0]]
            if c >= limit[0]: break
            b, rd = trreads(c, ct)
            for it in rd: emit(it)
            fbuf[(c, ct)] = b; nread[0] += 1
    limit = [24]
    def stage(st, pre_issued=None, fill=(), mid=None, cinit=False):
        part, half = st >> 1, st & 1
        base = [accA, accB, accA, accC][part]
        fill = list(fill); nfill = len(fill); done = 0
        gap = 0
        for n in range(9):
            c = 3 * st + n // 3; ct = n % 3; ks = c % 6
            idx = c * 3 + ct
            read_ahead(idx + 3)
            if n == 7 and mid is not None:
                a('s_barrier', muses=list(mid[0]))
                for it in mid[1]: emit(it)
            b = fbuf[(c, ct)]
            for tt in range(3):
                d = vr(acc(base, ct, tt), 4)
                c_ = '0' if (ks == 0 and not cinit) else d
                hf_ = ar(aH + (tt * 6 + ks) * 4, 4)
                if part == 2: a(f'v_mfma_f32_16x16x32_bf16 {d}, {hf_}, {ar(b,4)}, {c_}')
                else: a(f'v_mfma_f32_16x16x32_bf16 {d}, {ar(b,4)}, {hf_}, {c_}')
                gap += 1
                want = (nfill * gap) // 27
                while done < want:
                    emit(fill[done]); done += 1
                if tt == 0 and dq:
                    cc = (24 * 3 - len(dq)) // 3
                    if cc - NSL < c:
                        for x in dq.pop(0): emit(x)
        while done < nfill:
            emit(fill[done]); done += 1
        return None
    def cvts(base, dst_of):
        out = []
        for tt in range(3):
            for ct in range(3):
                s_ = acc(base, ct, tt); d_ = dst_of(tt, ct)
                out.append(I(f'v_cvt_pk_bf16_f32 v{d_}, v{s_}, v{s_+1}'))
                out.append(I(f'v_cvt_pk_bf16_f32 v{d_+1}, v{s_+2}, v{s_+3}'))
        return out
    pre = stage(0)
    pre = stage(1, pre)
    stp.stamp('q')
    xr = [I(f'ds_read_b64 {vr(vV+(tt*3+et)*2,2)}, v{vXa[et]} offset:{tt*6144}') for tt in range(3) for et in range(3)]
    xu = []
    for tt in range(3):
        for et in range(3):
            b = acc(accC, et, tt); x_ = vV + (tt * 3 + et) * 2
            xu += [I(f'v_lshlrev_b32 v{b}, 16, v{x_}'), I(f'v_and_b32 v{b+1}, 0xffff0000, v{x_}'),
                   I(f'v_lshlrev_b32 v{b+2}, 16, v{x_+1}'), I(f'v_and_b32 v{b+3}, 0xffff0000, v{x_+1}')]
    pre = stage(2, pre, fill=xr + cvts(accA, lambda tt, ct: vQ + tt * 6 + ct * 2))
    pre = stage(3, pre, fill=xu)
    stp.stamp('k')
    f4 = [I('s_nop 0')] * 3 + cvts(accB, lambda tt, ct: vK + tt * 6 + ct * 2)
    for tt in range(3):
        f4.append(I(f'v_mfma_f32_16x16x32_bf16 {vr(vS+4*tt,4)}, {vr(vK+6*tt,4)}, {vr(vQ+6*tt,4)}, 0'))
    for tt in range(3):
        f4.append(I(f'v_mfma_f32_16x16x16_bf16 {vr(vS+4*tt,4)}, {vr(vK+6*tt+4,2)}, {vr(vQ+6*tt+4,2)}, {vr(vS+4*tt,4)}'))
    for tt in range(3):
        f4.append(I(f'ds_write_b128 v{vSw}, {vr(vS+4*tt,4)} offset:{tt*1024}', ['sx']))
    def squeeze(lst, frac):
        n = len(lst); tot = int(n / frac) + 1
        return lst + [None] * (tot - n)
    _emit = emit
    def emit(it):
        if it is not None: _emit(it)
    sreads = [I(f'ds_read_b128 {vr(vSx+w2*4,4)}, v{vSr} offset:{w2*3072}') for w2 in range(4)]
    pre = stage(4, pre, fill=squeeze(f4, 20 / 27), mid=(['sx'], sreads))
    f5 = []
    b = vSx
    f5.append(I(f'v_pk_add_f32 {vr(b,2)}, {vr(b,2)}, {vr(b+4,2)}'))
    f5.append(I(f'v_pk_add_f32 {vr(b+2,2)}, {vr(b+2,2)}, {vr(b+6,2)}'))
    f5.append(I(f'v_pk_add_f32 {vr(b+8,2)}, {vr(b+8,2)}, {vr(b+12,2)}'))
    f5.append(I(f'v_pk_add_f32 {vr(b+10,2)}, {vr(b+10,2)}, {vr(b+14,2)}'))
    f5.append(I(f'v_pk_add_f32 {vr(b,2)}, {vr(b,2)}, {vr(b+8,2)}'))
    f5.append(I(f'v_pk_add_f32 {vr(b+2,2)}, {vr(b+2,2)}, {vr(b+10,2)}'))
    m_, m2_ = b + 4, b + 5
    f5.append(I(f'v_max3_f32 v{m_}, v{b}, v{b+1}, v{b+2}'))
    f5.append(I(f'v_max_f32 v{m_}, v{m_}, v{b+3}'))
    f5.append(I(f'v_mov_b32 v{m2_}, v{m_}'))
    f5.append(None); f5.append(None)
    f5.append(I(f'v_permlane16_swap_b32 v{m_}, v{m2_}'))
    f5.append(I(f'v_max_f32 v{m_}, v{m_}, v{m2_}'))
    f5.append(I(f'v_mul_f32 v{m_}, s{sC}, v{m_}'))
    for r in range(4): f5.append(I(f'v_fma_f32 v{b+r}, v{b+r}, s{sC}, -v{m_}'))
    for r in range(4): f5.append(I(f'v_exp_f32 v{b+r}, v{b+r}'))
    f5.append(None)
    f5.append(I(f'v_add_f32 v{m_}, v{b}, v{b+1}')); f5.append(I(f'v_add_f32 v{m2_}, v{b+2}, v{b+3}'))
    f5.append(I(f'v_add_f32 v{m_}, v{m_}, v{m2_}'))
    f5.append(I(f'v_mov_b32 v{m2_}, v{m_}'))
    f5.append(None); f5.append(None)
    f5.append(I(f'v_permlane16_swap_b32 v{m_}, v{m2_}'))
    f5.append(I(f'v_add_f32 v{m_}, v{m_}, v{m2_}'))
    f5.append(I(f'v_rcp_f32 v{m_}, v{m_}'))
    f5.append(None)
    f5.append(I(f'v_cndmask_b32 v{m_}, 0, v{m_}, s[{sMask}:{sMask+1}]'))
    f5.append(I(f'v_pk_mul_f32 {vr(b,2)}, {vr(b,2)}, {vr(m_,2)} op_sel_hi:[1,0]'))
    f5.append(I(f'v_pk_mul_f32 {vr(b+2,2)}, {vr(b+2,2)}, {vr(m_,2)} op_sel_hi:[1,0]'))
    f5.append(I(f'v_cvt_pk_bf16_f32 v{b+6}, v{b}, v{b+1}'))
    f5.append(I(f'v_cvt_pk_bf16_f32 v{b+7}, v{b+2}, v{b+3}'))
    f5.append(I(f'ds_write_b64 v{vPA[0]}, {vr(b+6,2)}', ['px']))
    preads = [I(f'ds_read_b64 {vr(vP+2*tt,2)}, v{vPA[1]} offset:{tt*512}') for tt in range(3)]
    limit[0] = 18
    pre = stage(5, pre, fill=squeeze(f5, 20 / 27), mid=(['px'], preads))
    stp.stamp('v')
    cv = cvts(accA, lambda tt, ct: vV + (tt * 3 + ct) * 2)
    for it in cv: emit(it)
    for tt in range(3):
        for ct in range(3):
            a(f'v_mfma_f32_16x16x16_bf16 {vr(acc(accA,ct,tt),4)}, {vr(vV+(tt*3+ct)*2,2)}, {vr(vP+2*tt,2)}, 0')
    vO = vK
    for tt in range(3):
        for ct in range(3):
            s_ = acc(accA, ct, tt); d_ = vO + (tt * 3 + ct) * 2
            a(f'v_cvt_pk_bf16_f32 v{d_}, v{s_}, v{s_+1}')
            a(f'v_cvt_pk_bf16_f32 v{d_+1}, v{s_+2}, v{s_+3}')
            a(f'ds_write_b64 v{vOw[ct]}, {vr(d_,2)} offset:{tt*6144}', mdefs=['oimg'])
    while dq:
        for x in dq.pop(0): emit(x)
    a('s_barrier', muses=['oimg'])
    limit[0] = 24
    read_ahead(18 * 3 + 2)
    for s in range(6):
        for tt in range(3):
            a(f'ds_read_b128 {ar(aH+(tt*6+s)*4,4)}, v{vHr[s&1]} offset:{(tt*6+s)*1024}')
    stp.stamp('oimg')
    limit[0] = 24
    pre = stage(6, pre, cinit=True)
    pre = stage(7, pre, cinit=True)
    stp.stamp('oproj')
    sm = [vS + 0, vS + 2, vS + 4]; sq = [vS + 6, vS + 8, vS + 10]
    for tt in range(3):
        regs = [acc(accC, et, tt) + 2 * h for et in range(3) for h in range(2)]
        a(f'v_pk_add_f32 {vr(sm[tt],2)}, {vr(regs[0],2)}, {vr(regs[1],2)}')
        a(f'v_pk_mul_f32 {vr(sq[tt],2)}, {vr(regs[0],2)}, {vr(regs[0],2)}')
    for k in range(1, 6):
        for tt in range(3):
            regs = [acc(accC, et, tt) + 2 * h for et in range(3) for h in range(2)]
            if k >= 2: a(f'v_pk_add_f32 {vr(sm[tt],2)}, {vr(sm[tt],2)}, {vr(regs[k],2)}')
            a(f'v_pk_fma_f32 {vr(sq[tt],2)}, {vr(regs[k],2)}, {vr(regs[k],2)}, {vr(sq[tt],2)}')
    for tt in range(3):
        a(f'v_add_f32 v{sm[tt]}, v{sm[tt]}, v{sm[tt]+1}')
        a(f'v_add_f32 v{sq[tt]}, v{sq[tt]}, v{sq[tt]+1}')
    for tt in range(3): a(f'v_permlane32_swap_b32 v{sm[tt]}, v{sq[tt]}')
    for tt in range(3): a(f'v_add_f32 v{sm[tt]}, v{sm[tt]}, v{sq[tt]}')
    cp = vS + 1
    a(f'v_mov_b32 v{cp}, v{sm[2]}')
    a(f'v_permlane16_swap_b32 v{sm[0]}, v{sm[1]}')
    a(f'v_permlane16_swap_b32 v{sm[2]}, v{cp}')
    a(f'v_add_f32 v{sm[0]}, v{sm[0]}, v{sm[1]}')
    a(f'v_add_f32 v{sm[2]}, v{sm[2]}, v{cp}')
    a(f'ds_write_b32 v{vStW[0]}, v{sm[0]}', mdefs=['st'])
    a(f'ds_write_b32 v{vStW[1]}, v{sm[2]}', mdefs=['st'])
    a('s_barrier', muses=['st'])
    stp.stamp('stbar')
    vR = accA
    for stat in range(2):
        for tt in range(3):
            a(f'ds_read_b128 {vr(vR+(stat*3+tt)*4,4)}, v{vStR} offset:{(stat*48+16*tt)*16}')
    mu = [vS + 0, vS + 2, vS + 4]; rs = [vS + 6, vS + 8, vS + 10]
    for stat, dst in ((0, mu), (1, rs)):
        for tt in range(3):
            b = vR + (stat * 3 + tt) * 4
            a(f'v_pk_add_f32 {vr(b,2)}, {vr(b,2)}, {vr(b+2,2)}')
        for tt in range(3):
            b = vR + (stat * 3 + tt) * 4
            a(f'v_add_f32 v{dst[tt]}, v{b}, v{b+1}')
    vMS = vQ
    st_out = ln_stats(mu, rs, vT[0:3])
    for n_, it in enumerate(st_out):
        emit(it)
        if n_ == 2:
            for tt in range(3): a(f'v_mov_b32 v{vMS+2*tt}, v{mu[tt]}')
        if n_ == 14:
            for tt in range(3): a(f'v_mov_b32 v{vMS+2*tt+1}, v{rs[tt]}')
        if n_ == 17:
            for tt in range(3): a(f'v_mul_f32 v{vMS+2*tt+1}, v{vMS+2*tt+1}, v{rs[tt]}')
    a(f"""
    s_cmp_eq_u32 s{sW}, 1
    s_cselect_b64 vcc, -1, 0
    v_cndmask_b32 v{vMS}, v{vMS}, v{vMS+2}, vcc
    v_cndmask_b32 v{vMS+1}, v{vMS+1}, v{vMS+3}, vcc
    s_cmp_eq_u32 s{sW}, 2
    s_cselect_b64 vcc, -1, 0
    v_cndmask_b32 v{vMS}, v{vMS}, v{vMS+4}, vcc
    v_cndmask_b32 v{vMS+1}, v{vMS+1}, v{vMS+5}, vcc
    """)
    a(f'buffer_store_dwordx2 {vr(vMS,2)}, v{vStG}, s[20:23], 0 offen sc1')
    vPk2 = vV
    for tt in range(3):
        for et in range(3):
            b = acc(accC, et, tt); d_ = vPk2 + (tt * 3 + et) * 2
            a(f'v_pk_fma_f32 {vr(b,2)}, {vr(b,2)}, {vr(rs[tt],2)}, {vr(mu[tt],2)} op_sel_hi:[1,0,0]')
            a(f'v_pk_fma_f32 {vr(b+2,2)}, {vr(b+2,2)}, {vr(rs[tt],2)}, {vr(mu[tt],2)} op_sel_hi:[1,0,0]')
        for et in range(3):
            b = acc(accC, et, tt); d_ = vPk2 + (tt * 3 + et) * 2
            a(f'v_cvt_pk_bf16_f32 v{d_}, v{b}, v{b+1}')
            a(f'v_cvt_pk_bf16_f32 v{d_+1}, v{b+2}, v{b+3}')
            a(f'ds_write_b64 v{vGw[et]}, {vr(d_,2)} offset:{tt*6144}', mdefs=['stg'])
    a('s_barrier', muses=['stg'])
    stp.stamp('stg')
    vOut = accA
    for aa in range(2):
        for p in range(3):
            a(f'ds_read_b128 {vr(vOut+(aa*3+p)*4,4)}, v{vRoL[aa]} offset:{128*p}')
    for aa in range(2):
        if aa == 1:
            a(f's_cmp_ge_u32 s{sW}, 2')
            a('s_cbranch_scc1 LA_nost')
        for p in range(3):
            so = ['0', f's{sP1}', f's{sP2}'][p]
            a(f'buffer_store_dwordx4 {vr(vOut+(aa*3+p)*4,4)}, v{vRoG[aa]}, s[20:23], {so} offen sc1')
    a('LA_nost:')
    stp.stamp('stores')
    if stamps:
        a('s_waitcnt vmcnt(0)')
        stp.stamp('drained')
    if 'clk' in dbg:
        a('s_waitcnt vmcnt(0)')
        dbg_clock_end(a, sW)
    stp.dump(sW, 's[20:23]', 4)
    build_main.names = stp.names
    a('s_endpgm')
    return finalize(a)

def build_spare():
    a = Asm()
    SWQ, SWO, SWS = 12, 16, 20
    sW, sT0, sT1, sT2, sIdx, sCt, sS = 24, 26, 27, 28, 29, 30, 31
    vLane, vG, vI = 1, 2, 3
    vT = [4, 5, 6, 7, 8]
    vA0, vA1, vB = 9, 10, 11
    vAf = 16
    vBf = 64
    vRaw = 96
    vD = 150
    a(f"""
    s_load_dwordx2 s[12:13], s[0:1], 24
    s_load_dwordx2 s[16:17], s[0:1], 32
    s_load_dwordx2 s[20:21], s[0:1], 56
    v_lshrrev_b32 v{vT[0]}, 6, v0
    v_and_b32 v{vLane}, 63, v0
    v_readfirstlane_b32 s{sW}, v{vT[0]}
    v_lshrrev_b32 v{vG}, 4, v{vLane}
    v_and_b32 v{vI}, 15, v{vLane}
    s_mov_b32 s14, {192*576*2}
    s_mov_b32 s15, 0x00020000
    s_mov_b32 s18, {192*192*2}
    s_mov_b32 s19, 0x00020000
    s_mov_b32 s22, {WSUSE}
    s_mov_b32 s23, 0x00020000
    s_sub_u32 s{sIdx}, s2, 216
    s_lshl_b32 s{sIdx}, s{sIdx}, 2
    s_add_u32 s{sIdx}, s{sIdx}, s{sW}
    s_cmp_ge_u32 s{sIdx}, 72
    s_cbranch_scc1 LA_wvo
    """)
    head = finalize(a)
    a = Asm()
    a(f"""
    s_waitcnt lgkmcnt(0)
    s_mul_hi_u32 s{sCt}, s{sIdx}, {(2**32 + 5)//6}
    s_mul_i32 s{sT0}, s{sCt}, 6
    s_sub_u32 s{sS}, s{sIdx}, s{sT0}
    ; A rows: d = 32 s + 8 (i>>2) + 4 b + (i&3)
    v_lshrrev_b32 v{vT[0]}, 2, v{vI}
    v_lshlrev_b32 v{vT[0]}, 3, v{vT[0]}
    v_and_b32 v{vT[1]}, 3, v{vI}
    v_add_u32 v{vT[0]}, v{vT[0]}, v{vT[1]}         ; 8(i>>2)+(i&3)
    s_lshl_b32 s{sT0}, s{sS}, 5
    v_add_u32 v{vT[1]}, s{sT0}, v{vT[0]}
    v_mul_u32_u24 v{vA0}, 1152, v{vT[1]}
    v_lshl_add_u32 v{vA0}, v{vG}, 4, v{vA0}
    v_add_u32 v{vA1}, {4*1152}, v{vA0}
    s_lshr_b32 s{sT0}, s{sCt}, 1
    s_lshl_b32 s{sT0}, s{sT0}, 5
    s_and_b32 s{sT1}, s{sCt}, 1
    s_lshl_b32 s{sT1}, s{sT1}, 2
    s_add_u32 s{sT0}, s{sT0}, s{sT1}
    v_add_u32 v{vT[1]}, s{sT0}, v{vT[0]}
    v_mul_u32_u24 v{vB}, 1152, v{vT[1]}
    v_lshl_add_u32 v{vB}, v{vG}, 4, v{vB}
    """)
    for es in range(6):
        a(f'buffer_load_dwordx4 {vr(vAf+8*es,4)}, v{vA0}, s[12:15], 0 offen offset:{64*es}')
        a(f'buffer_load_dwordx4 {vr(vAf+8*es+4,4)}, v{vA1}, s[12:15], 0 offen offset:{64*es}')
        a(f'buffer_load_dwordx4 {vr(vBf+4*es,4)}, v{vB}, s[12:15], 0 offen offset:{384+64*es}')
    for es in range(6):
        for b in range(2):
            d = vr(vD + 4 * b, 4)
            a(f'v_mfma_f32_16x16x32_bf16 {d}, {vr(vAf+8*es+4*b,4)}, {vr(vBf+4*es,4)}, {"0" if es == 0 else d}')
    a(f's_mov_b32 s{sT0}, {f2u(SCALE_L2E)}')
    for r in range(8): a(f'v_mul_f32 v{vD+r}, s{sT0}, v{vD+r}')
    for r in range(4): a(f'v_cvt_pk_bf16_f32 v{vD+r}, v{vD+2*r}, v{vD+2*r+1}')
    a(f"""
    s_lshl_b32 s{sT0}, s{sIdx}, 10
    s_add_u32 s{sT0}, s{sT0}, {WQKOFF}
    v_lshlrev_b32 v{vT[0]}, 4, v{vLane}
    buffer_store_dwordx4 {vr(vD,4)}, v{vT[0]}, s[20:23], s{sT0} offen
    s_endpgm
    """)
    wqk = finalize(a)
    a = Asm()
    a(f"""
    s_waitcnt lgkmcnt(0)
    s_sub_u32 s{sIdx}, s{sIdx}, 72
    s_mul_hi_u32 s{sCt}, s{sIdx}, {(2**32 + 5)//6}
    s_mul_i32 s{sT0}, s{sCt}, 6
    s_sub_u32 s{sS}, s{sIdx}, s{sT0}
    s_lshl_b32 s{sT0}, s{sS}, 5
    v_add_u32 v{vT[0]}, s{sT0}, v{vI}
    v_mul_u32_u24 v{vA0}, 1152, v{vT[0]}
    v_lshl_add_u32 v{vA0}, v{vG}, 4, v{vA0}
    v_add_u32 v{vA1}, {16*1152}, v{vA0}
    s_mul_hi_u32 s{sT0}, s{sCt}, {(2**32 + 2)//3}      ; w'
    s_mul_i32 s{sT1}, s{sT0}, 3
    s_sub_u32 s{sT1}, s{sCt}, s{sT1}                    ; et
    s_mul_i32 s{sT0}, s{sT0}, 48
    s_cmp_eq_u32 s{sT1}, 2
    s_cselect_b32 s{sT2}, 2, 3
    s_cselect_b32 s{sT1}, 8, s{sT1}
    s_lshl_b32 s{sT1}, s{sT1}, 2
    s_add_u32 s{sT0}, s{sT0}, s{sT1}
    v_lshrrev_b32 v{vT[0]}, 2, v{vI}
    v_lshlrev_b32 v{vT[0]}, s{sT2}, v{vT[0]}
    v_and_b32 v{vT[1]}, 3, v{vI}
    v_add3_u32 v{vT[0]}, v{vT[0]}, v{vT[1]}, s{sT0}     ; e
    v_lshlrev_b32 v{vT[0]}, 1, v{vT[0]}
    v_mul_u32_u24 v{vT[1]}, {8*384}, v{vG}
    v_add_u32 v{vB}, v{vT[0]}, v{vT[1]}
    """)
    for cs in range(6):
        a(f'buffer_load_dwordx4 {vr(vAf+8*cs,4)}, v{vA0}, s[12:15], 0 offen offset:{768+64*cs}')
        a(f'buffer_load_dwordx4 {vr(vAf+8*cs+4,4)}, v{vA1}, s[12:15], 0 offen offset:{768+64*cs}')
    for cs in range(6):
        a(f's_mov_b32 s{sT2}, {cs*32*384}')
        for j in range(8):
            a(f'buffer_load_ushort v{vRaw+8*cs+j}, v{vB}, s[16:19], s{sT2} offen offset:{384*j}')
    for cs in range(6):
        for j in range(4):
            a(f'v_lshl_or_b32 v{vBf+4*cs+j}, v{vRaw+8*cs+2*j+1}, 16, v{vRaw+8*cs+2*j}')
        for b in range(2):
            d = vr(vD + 4 * b, 4)
            a(f'v_mfma_f32_16x16x32_bf16 {d}, {vr(vAf+8*cs+4*b,4)}, {vr(vBf+4*cs,4)}, {"0" if cs == 0 else d}')
    for r in range(4): a(f'v_cvt_pk_bf16_f32 v{vD+r}, v{vD+2*r}, v{vD+2*r+1}')
    a(f"""
    s_lshl_b32 s{sT0}, s{sIdx}, 10
    s_add_u32 s{sT0}, s{sT0}, {WVOOFF}
    v_lshlrev_b32 v{vT[0]}, 4, v{vLane}
    buffer_store_dwordx4 {vr(vD,4)}, v{vT[0]}, s[20:23], s{sT0} offen
    s_endpgm
    """)
    wvo = finalize(a)
    return head + wqk + 'LA_wvo:\n' + wvo

def build_A(name, stamps=False, dbg=()):
    s = f""".globl {name}
.p2align 8
.type {name},@function
{name}:
  s_cmp_ge_u32 s2, 252
  s_cbranch_scc1 LA_end
  s_cmp_ge_u32 s2, 216
  s_cbranch_scc1 LA_spare
"""
    s += build_main(stamps, dbg)
    s += 'LA_spare:\n' + build_spare()
    s += 'LA_end:\n  s_endpgm\n'
    return s
```

```python
import sys
sys.path.insert(0, 'gen')
from common import *
import gen_a
DESC = """.p2align 6
.amdhsa_kernel {name}
  .amdhsa_next_free_vgpr {vgpr}
  .amdhsa_next_free_sgpr {sgpr}
  .amdhsa_accum_offset {acc}
  .amdhsa_group_segment_fixed_size 0
  .amdhsa_kernarg_size 64
  .amdhsa_user_sgpr_count 2
  .amdhsa_user_sgpr_kernarg_segment_ptr 1
  .amdhsa_system_sgpr_workgroup_id_x 1
.end_amdhsa_kernel
"""
HEADER = """; TimeSformer block (temporal attention + spatial attention), gfx950, hand-written via a Python generator.
"""
def make(kernels, fn, code_span=0x8000):
    s = HEADER
    for name, grid, lds, text, vgpr, acc in kernels:
        s += f'; @launch kernel={name} grid=({grid},1,1) block=(256,1,1) lds={lds}\n'
    s += '.amdgcn_target "amdgcn-amd-amdhsa--gfx950"\n.text\n'
    s += '.set CODE_SPAN, 0x%x\n' % code_span
    seen = []
    for name, grid, lds, text, vgpr, acc in kernels:
        if name in seen: continue
        seen.append(name)
        s += text
    s += '.section .rodata,"a"\n'
    seen = []
    for name, grid, lds, text, vgpr, acc in kernels:
        if name in seen: continue
        seen.append(name)
        s += DESC.format(name=name, vgpr=vgpr, sgpr=96, acc=acc)
    open(fn, 'w').write(s)
if __name__ == '__main__':
    NA = 'standalone__video_timesformer__vision_kernel'
    A = (NA, 252, gen_a.LDS_A, gen_a.build_A(NA), 512, 256)
    make([A], 'a_only.s')
    try:
        import gen_b
        NB = 'standalone__video_timesformer__vision_b_kernel'
        B = (NB, 216, gen_b.LDS_B, gen_b.build_B(NB), 512, 256)
        make([A, B], 'ab.s')
    except ImportError as e:
        print('no B yet', e)
    As = (NA, 252, gen_a.LDS_A, gen_a.build_A(NA, True), 512, 256)
    Bs = (NB, 216, gen_b.LDS_B, gen_b.build_B(NB, True), 512, 256)
    make([As, Bs], 'ab_st.s')
    import json
    json.dump([gen_a.build_main.names, gen_b.build_main.names], open('ab_st.json', 'w'))
    for nm, dbg in {'w9': ('wpre9',), 'w12': ('wpre12',), 'w18': ('wpre18',), 'w6': ('wpre6',)}.items():
        Bd = (NB, 216, gen_b.LDS_B, gen_b.build_B(NB, True, dbg), 512, 256)
        make([As, Bd], f'ab_st_{nm}.s')
        json.dump([gen_a.build_main.names, gen_b.build_main.names], open(f'ab_st_{nm}.json', 'w'))
    Ac = (NA, 252, gen_a.LDS_A, gen_a.build_A(NA, False, ('clk',)), 512, 256)
    Bc = (NB, 216, gen_b.LDS_B, gen_b.build_B(NB, False, ('clk',)), 512, 256)
    make([Ac, Bc], 'ab_clk.s')
    Bdl = (NB, 216, gen_b.LDS_B, gen_b.build_B(NB, False, ('delay', 'clk')), 512, 256)
    make([A, Bdl], 'ab_delay.s')
    An = (NA, 252, gen_a.LDS_A, gen_a.build_A(NA, False, ('nocpf',)), 512, 256)
    make([An, B], 'ab_nocpf.s')
    EMPTY = lambda n: (n, 256, 0, f".globl {n}\n.p2align 8\n.type {n},@function\n{n}:\n  s_endpgm\n", 8, 8)
    make([A, B, EMPTY('e1_kernel')], 'ab_e1.s')
    make([A, B, EMPTY('e1_kernel'), EMPTY('e1_kernel'), EMPTY('e1_kernel')], 'ab_e3.s')
```

```python
from asmb import *
from common import *

SLOT = 24576
NSL = 5
HL = NSL * SLOT
SX = HL
XI = HL + 18432
ST = XI + 18432
PX = ST + 1536
LDS_A = PX + 1536

def build_main(stamps=False, dbg=()):
    a = Asm()
    stp = Stamps(a, stamps, 0)
    stp.start()
    if 'clk' in dbg: dbg_clock_start(a)
    sW, sN0, sT0, sT1, sT2, sWB = 24, 25, 26, 27, 28, 29
    sC = 30; sMask = 32
    sP1, sP2 = 34, 35
    sInv = 38; sSo = 39
    vLane, vG, vI = 1, 2, 3
    vT = [4, 5, 6, 7, 8]
    vWq, vWo = 9, 10
    vTr = [[11 + 3 * st_ + ct for ct in range(3)] for st_ in range(3)]
    vHr = [20, 21]
    vXs = 22; vXl = [23, 24, 25]; vHw = [26, 27, 28]
    vJunk = [29, 30]
    vOw = [33, 34, 35]; vSw = 36; vSr = 37; vStW = [38, 39]; vStR = 40
    vGw = [41, 42, 43]; vRoL = [44, 45]; vRoG = [46, 47]; vStG = 48
    vPA = [31, 32]
    vX = 50
    vP = 50
    accA, accB = 68, 104
    vQ, vK, vV = 140, 158, 176
    vS = 194
    vSx = 140
    accC = 220
    aH = 0; aW = 72
    def I(text, md=(), mu=()): return (text, md, mu)
    def emit(it):
        if it is not None: a(it[0], mdefs=it[1], muses=it[2])

    a(f"""
    s_load_dwordx2 s[8:9], s[0:1], 0
    s_load_dwordx2 s[12:13], s[0:1], 8
    s_load_dwordx2 s[16:17], s[0:1], 16
    s_load_dwordx2 s[20:21], s[0:1], 56
    v_lshrrev_b32 v{vT[0]}, 6, v0
    v_and_b32 v{vLane}, 63, v0
    v_readfirstlane_b32 s{sW}, v{vT[0]}
    v_lshrrev_b32 v{vT[0]}, 3, v{vLane}            ; t
    v_and_b32 v{vT[1]}, 7, v{vLane}                ; slot
    v_xor_b32 v{vT[1]}, v{vT[1]}, v{vT[0]}
    v_mul_u32_u24 v{vXs}, {XROW}, v{vT[0]}
    v_lshl_add_u32 v{vXs}, v{vT[1]}, 4, v{vXs}
    s_mul_i32 s{sN0}, s2, 6
    s_mov_b32 s10, {XBYTES}
    s_mov_b32 s11, 0x00020000
    s_mov_b32 s14, {192*576*2}
    s_mov_b32 s15, 0x00020000
    s_mov_b32 s18, {192*192*2}
    s_mov_b32 s19, 0x00020000
    s_mov_b32 s22, {WSUSE}
    s_mov_b32 s23, 0x00020000
    s_mul_i32 s{sT2}, s{sN0}, 384
    """)
    for k in range(5):
        a(f's_add_u32 s{sT0}, s{sW}, {4*k}')
        if k == 4: a(f's_min_u32 s{sT0}, s{sT0}, 17')
        a(f"""
        s_lshl_b32 s{sT1}, s{sT0}, 10
        s_add_u32 m0, s{sT1}, {XI}
        s_lshl_b32 s{sT0}, s{sT0}, 7
        s_add_u32 s{sT0}, s{sT0}, s{sT2}
        """)
        a(f'buffer_load_dwordx4 v{vXs}, s[8:11], s{sT0} offen lds', mdefs=['x'])
    a(f"""
    s_lshr_b32 s{sT0}, s2, 3
    s_mul_i32 s{sT0}, s{sT0}, 12288
    v_lshlrev_b32 v{vT[1]}, 7, v0
    v_add_u32 v{vT[1]}, s{sT0}, v{vT[1]}
    v_cmp_gt_u32 vcc, 96, v0
    v_mov_b32 v{vT[2]}, 0x7fffffff
    v_lshrrev_b32 v{vG}, 4, v{vLane}
    v_and_b32 v{vI}, 15, v{vLane}
    v_cndmask_b32 v{vT[1]}, v{vT[2]}, v{vT[1]}, vcc
    v_subrev_u32 v{vT[2]}, {192*576*2}, v{vT[1]}
    """)
    a(f'buffer_load_dword v{vJunk[0]}, v{vT[1]}, s[12:15], 0 offen')
    a(f'buffer_load_dword v{vJunk[1]}, v{vT[2]}, s[16:19], 0 offen')
    stp.stamp('issued')
    a(f"""
    v_lshrrev_b32 v{vT[0]}, 3, v{vLane}            ; r
    v_bfe_u32 v{vT[3]}, v{vLane}, 4, 2             ; (r>>1)&3
    v_lshlrev_b32 v{vT[3]}, 1, v{vT[3]}
    v_and_b32 v{vT[4]}, 7, v{vLane}
    v_xor_b32 v{vT[3]}, v{vT[3]}, v{vT[4]}         ; u
    s_lshl_b32 s{sT0}, s{sW}, 3
    v_add_u32 v{vT[0]}, s{sT0}, v{vT[0]}           ; 8w + r
    v_mul_u32_u24 v{vWq}, 1152, v{vT[0]}
    v_lshl_add_u32 v{vWq}, v{vT[3]}, 4, v{vWq}
    v_mul_u32_u24 v{vWo}, 384, v{vT[0]}
    v_lshl_add_u32 v{vWo}, v{vT[3]}, 4, v{vWo}
    s_mul_i32 s{sWB}, s{sW}, 3072
    """)
    def dma_items(S):
        part, m = divmod(S, 3)
        sl = S % NSL; out = []
        for aa in range(2):
            so = (64 * m + 32 * aa) * 1152 + part * 384 if part < 3 else (64 * m + 32 * aa) * 384
            for p in range(3):
                grp = []
                if p == 0: grp.append(I(f's_mov_b32 s{sSo}, {so}'))
                grp.append(I(f's_add_u32 m0, s{sWB}, {sl*SLOT + aa*12288 + p*896}'))
                if part < 3: grp.append(I(f'buffer_load_dwordx4 v{vWq}, s[12:15], s{sSo} offen offset:{128*p} lds', [('W', S)]))
                else: grp.append(I(f'buffer_load_dwordx4 v{vWo}, s[16:19], s{sSo} offen offset:{128*p} lds', [('W', S)]))
                out.append(grp)
        return out
    dq = [g for S in range(12) for g in dma_items(S)]
    npre = 3
    for x in dbg:
        if x.startswith('pre'): npre = int(x[3:])
    for _ in range(npre):
        for it in dq.pop(0): emit(it)
    a(f's_mul_i32 s{sT1}, s{sW}, 12')
    for j in range(3):
        a(f"""
        v_add_u32 v{vT[0]}, s{sT1}, v{vG}
        v_add_u32 v{vT[0]}, {4*j}, v{vT[0]}            ; tk
        v_and_b32 v{vT[1]}, 7, v{vT[0]}                ; t
        v_lshrrev_b32 v{vT[2]}, 1, v{vI}
        v_xor_b32 v{vT[2]}, v{vT[2]}, v{vT[1]}
        v_lshlrev_b32 v{vT[2]}, 4, v{vT[2]}
        v_lshl_add_u32 v{vT[2]}, v{vT[1]}, 7, v{vT[2]}
        v_and_b32 v{vT[1]}, 1, v{vI}
        v_lshl_add_u32 v{vT[2]}, v{vT[1]}, 3, v{vT[2]}
        v_lshrrev_b32 v{vT[1]}, 3, v{vT[0]}            ; nl
        v_mul_u32_u24 v{vT[1]}, 3072, v{vT[1]}
        v_add_u32 v{vT[2]}, v{vT[2]}, v{vT[1]}
        v_add_u32 v{vXl[j]}, {XI}, v{vT[2]}
        v_lshrrev_b32 v{vT[2]}, 4, v{vT[0]}            ; tt
        v_mul_u32_u24 v{vT[2]}, 6, v{vT[2]}
        v_lshrrev_b32 v{vT[4]}, 3, v{vI}               ; spar
        v_add_u32 v{vT[2]}, v{vT[2]}, v{vT[4]}
        v_lshlrev_b32 v{vT[2]}, 10, v{vT[2]}
        v_mul_u32_u24 v{vT[4]}, 12, v{vT[4]}
        v_and_b32 v{vT[3]}, 15, v{vT[0]}               ; ii
        v_xor_b32 v{vT[3]}, v{vT[3]}, v{vT[4]}
        v_and_b32 v{vT[4]}, 3, v{vI}                   ; g'
        v_xor_b32 v{vT[3]}, v{vT[3]}, v{vT[4]}
        v_lshl_add_u32 v{vT[3]}, v{vT[4]}, 4, v{vT[3]}
        v_lshl_add_u32 v{vT[2]}, v{vT[3]}, 4, v{vT[2]}
        v_bfe_u32 v{vT[4]}, v{vI}, 2, 1
        v_lshl_add_u32 v{vT[2]}, v{vT[4]}, 3, v{vT[2]}
        v_add_u32 v{vHw[j]}, {HL}, v{vT[2]}
        """)
    a(f"""
    v_lshrrev_b32 v{vT[0]}, 1, v{vG}               ; g>>1
    v_mul_u32_u24 v{vT[0]}, 3072, v{vT[0]}
    v_and_b32 v{vT[1]}, 1, v{vG}
    v_lshlrev_b32 v{vT[1]}, 2, v{vT[1]}
    v_lshrrev_b32 v{vT[2]}, 2, v{vI}
    v_add_u32 v{vT[1]}, v{vT[1]}, v{vT[2]}         ; r
    v_lshl_add_u32 v{vT[0]}, v{vT[1]}, 7, v{vT[0]}
    v_bfe_u32 v{vT[1]}, v{vT[1]}, 1, 2
    v_lshlrev_b32 v{vT[1]}, 1, v{vT[1]}            ; swz
    v_bfe_u32 v{vT[2]}, v{vI}, 1, 1                ; c>>1
    v_xor_b32 v{vT[1]}, v{vT[1]}, v{vT[2]}         ; swz ^ (c>>1)
    v_and_b32 v{vT[2]}, 1, v{vI}
    v_lshl_add_u32 v{vT[0]}, v{vT[2]}, 3, v{vT[0]}
    """)
    for ct in range(3):
        a(f"""
        s_mul_i32 s{sT0}, s{sW}, 3
        s_add_u32 s{sT0}, s{sT0}, {ct}            ; m
        s_and_b32 s{sT1}, s{sT0}, 3
        s_lshl_b32 s{sT1}, s{sT1}, 1              ; u0
        s_lshr_b32 s{sT0}, s{sT0}, 2
        s_lshl_b32 s{sT0}, s{sT0}, 10             ; p*1024
        v_xor_b32 v{vT[2]}, s{sT1}, v{vT[1]}
        v_lshl_add_u32 v{vT[2]}, v{vT[2]}, 4, v{vT[0]}
        v_add_u32 v{vTr[0][ct]}, s{sT0}, v{vT[2]}
        v_add_u32 v{vTr[1][ct]}, {2*SLOT}, v{vTr[0][ct]}
        v_add_u32 v{vTr[2][ct]}, {4*SLOT}, v{vTr[0][ct]}
        """)
    a(f"""
    v_xor_b32 v{vT[0]}, v{vI}, v{vG}
    v_lshl_add_u32 v{vT[1]}, v{vG}, 4, v{vT[0]}
    v_lshlrev_b32 v{vHr[0]}, 4, v{vT[1]}
    v_add_u32 v{vHr[0]}, {HL}, v{vHr[0]}
    v_xor_b32 v{vHr[1]}, 192, v{vHr[0]}
    """)
    assert HL % 256 == 0
    for ct in range(3):
        a(f"""
        s_mul_i32 s{sT0}, s{sW}, 3
        s_add_u32 s{sT0}, s{sT0}, {ct}            ; a4
        s_lshr_b32 s{sT1}, s{sT0}, 1              ; s
        s_and_b32 s{sT0}, s{sT0}, 1               ; hi
        s_lshl_b32 s{sT0}, s{sT0}, 3
        s_and_b32 s{sT2}, s{sT1}, 1
        s_mul_i32 s{sT2}, s{sT2}, 192
        s_lshl_b32 s{sT1}, s{sT1}, 10
        s_add_u32 s{sT0}, s{sT0}, s{sT1}
        v_xor_b32 v{vOw[ct]}, s{sT2}, v{vHr[0]}
        v_add_u32 v{vOw[ct]}, s{sT0}, v{vOw[ct]}
        """)
    a(f"""
    s_mul_i32 s{sT0}, s{sW}, 3072
    s_add_u32 s{sT0}, s{sT0}, {SX}
    v_lshlrev_b32 v{vSw}, 4, v{vLane}
    v_add_u32 v{vSr}, {SX}, v{vSw}
    v_add_u32 v{vSw}, s{sT0}, v{vSw}
    s_mov_b32 s{sC}, {f2u(SCALE_L2E)}
    s_mov_b32 s{sInv}, {f2u(1.0/192)}
    v_lshrrev_b32 v{vT[0]}, 5, v{vLane}
    v_bfe_u32 v{vT[1]}, v{vLane}, 3, 1
    v_cmp_eq_u32 s[{sMask}:{sMask+1}], v{vT[0]}, v{vT[1]}
    v_lshrrev_b32 v{vT[0]}, 1, v{vG}
    v_mul_u32_u24 v{vT[0]}, 48, v{vT[0]}
    v_add_u32 v{vT[0]}, v{vT[0]}, v{vI}
    v_and_b32 v{vT[1]}, 1, v{vG}
    v_lshl_add_u32 v{vT[1]}, v{vT[1]}, 4, v{vT[0]}
    s_lshl_b32 s{sT0}, s{sW}, 2
    s_add_u32 s{sT0}, s{sT0}, {ST}
    v_lshlrev_b32 v{vT[1]}, 4, v{vT[1]}
    v_add_u32 v{vStW[0]}, s{sT0}, v{vT[1]}
    v_add_u32 v{vT[0]}, 32, v{vT[0]}
    v_lshlrev_b32 v{vT[0]}, 4, v{vT[0]}
    v_add_u32 v{vStW[1]}, s{sT0}, v{vT[0]}
    v_lshlrev_b32 v{vStR}, 4, v{vI}
    v_add_u32 v{vStR}, {ST}, v{vStR}
    """)
    for et in range(3):
        a(f"""
        s_mul_i32 s{sT0}, s{sW}, 6
        s_add_u32 s{sT0}, s{sT0}, {2*et}
        v_lshrrev_b32 v{vT[0]}, 1, v{vG}
        v_add_u32 v{vT[0]}, s{sT0}, v{vT[0]}        ; U
        v_and_b32 v{vT[1]}, 7, v{vT[0]}             ; u
        v_lshrrev_b32 v{vT[0]}, 3, v{vT[0]}         ; p
        v_and_b32 v{vT[2]}, 7, v{vI}                ; t
        v_xor_b32 v{vT[1]}, v{vT[1]}, v{vT[2]}
        v_lshlrev_b32 v{vT[1]}, 4, v{vT[1]}
        v_lshl_add_u32 v{vT[1]}, v{vT[2]}, 7, v{vT[1]}
        v_lshl_add_u32 v{vT[1]}, v{vT[0]}, 10, v{vT[1]}
        v_and_b32 v{vT[2]}, 1, v{vG}
        v_lshl_add_u32 v{vT[1]}, v{vT[2]}, 3, v{vT[1]}
        v_lshrrev_b32 v{vT[2]}, 3, v{vI}
        v_mul_u32_u24 v{vT[2]}, 3072, v{vT[2]}
        v_add_u32 v{vT[1]}, v{vT[1]}, v{vT[2]}
        v_add_u32 v{vGw[et]}, {XI}, v{vT[1]}
        """)
    a(f"""
    v_lshrrev_b32 v{vT[0]}, 3, v{vLane}       ; t
    v_and_b32 v{vT[1]}, 7, v{vLane}           ; slot
    """)
    for aa in range(2):
        if aa == 0: a(f's_mov_b32 s{sT0}, s{sW}')
        else: a(f's_and_b32 s{sT0}, s{sW}, 1\ns_add_u32 s{sT0}, s{sT0}, 4')
        a(f"""
        s_add_u32 s{sT1}, s{sT0}, s{sN0}          ; n
        s_lshr_b32 s{sT2}, s{sT1}, 1
        s_and_b32 s{sT2}, s{sT2}, 3
        s_lshl_b32 s{sT2}, s{sT2}, 1              ; swz(n&7)
        v_xor_b32 v{vT[2]}, s{sT2}, v{vT[1]}      ; u
        v_xor_b32 v{vT[2]}, v{vT[2]}, v{vT[0]}    ; u ^ t
        v_lshlrev_b32 v{vT[2]}, 4, v{vT[2]}
        v_lshl_add_u32 v{vT[2]}, v{vT[0]}, 7, v{vT[2]}
        s_mul_i32 s{sT0}, s{sT0}, 3072
        s_add_u32 s{sT0}, s{sT0}, {XI}
        v_add_u32 v{vRoL[aa]}, s{sT0}, v{vT[2]}
        s_lshr_b32 s{sT2}, s{sT1}, 5
        s_mul_i32 s{sT2}, s{sT2}, 12288
        s_and_b32 s{sT1}, s{sT1}, 31
        s_lshl_b32 s{sT1}, s{sT1}, 7
        s_add_u32 s{sT2}, s{sT2}, s{sT1}
        v_mul_u32_u24 v{vT[3]}, {TIMG}, v{vT[0]}
        v_lshl_add_u32 v{vT[3]}, v{vT[1]}, 4, v{vT[3]}
        v_add_u32 v{vRoG[aa]}, s{sT2}, v{vT[3]}
        """)
    a(f's_movk_i32 s{sP1}, 4096\ns_movk_i32 s{sP2}, 8192')
    a(f"""
    s_lshl_b32 s{sT0}, s{sW}, 1
    s_add_u32 s{sT0}, s{sT0}, s{sN0}
    v_lshrrev_b32 v{vT[0]}, 3, v{vI}
    v_add_u32 v{vT[0]}, s{sT0}, v{vT[0]}      ; n
    v_and_b32 v{vT[1]}, 7, v{vI}
    v_mul_u32_u24 v{vT[1]}, 1296, v{vT[1]}
    v_add_u32 v{vT[0]}, v{vT[0]}, v{vT[1]}
    v_lshlrev_b32 v{vT[0]}, 3, v{vT[0]}
    v_add_u32 v{vT[0]}, {STATOFF}, v{vT[0]}
    s_cmp_eq_u32 s{sW}, 3
    s_cselect_b32 s{sT1}, 0, 1
    v_cmp_gt_u32 vcc, s{sT1}, v{vG}
    v_mov_b32 v{vT[1]}, 0x7fffffff
    s_cmp_eq_u32 s{sW}, 3
    s_cselect_b32 s{sT0}, 0, s{sW}
    v_cndmask_b32 v{vStG}, v{vT[1]}, v{vT[0]}, vcc
    s_lshl_b32 s{sT1}, s{sT0}, 10
    v_add_u32 v{vSr}, s{sT1}, v{vSr}
    s_lshl_b32 s{sT1}, s{sT0}, 9
    s_add_u32 s{sT1}, s{sT1}, {PX}
    v_lshlrev_b32 v{vT[0]}, 3, v{vLane}
    v_add_u32 v{vPA[0]}, s{sT1}, v{vT[0]}
    v_add_u32 v{vPA[1]}, {PX}, v{vT[0]}
    """)
    stp.stamp('addr')
    a('s_barrier', muses=['x'])
    stp.stamp('xarr')
    ln = []
    vSum = [accA + 2 * j for j in range(3)]; vSq = [accA + 6 + 2 * j for j in range(3)]
    vF = accA + 12
    for j in range(3):
        for m in range(3):
            ln.append(I(f'ds_read_b64 {vr(vX+6*j+2*m,2)}, v{vXl[j]} offset:{1024*m}'))
    ln.append(I(f's_mov_b32 s{sT0}, 0x3f803f80'))
    for j in range(3):
        ln.append(I(f'v_mov_b32 v{vSum[j]}, 0')); ln.append(I(f'v_mov_b32 v{vSq[j]}, 0'))
    for k in range(6):
        for j in range(3):
            ln.append(I(f'v_dot2c_f32_bf16 v{vSum[j]}, s{sT0}, v{vX+6*j+k}'))
            ln.append(I(f'v_dot2c_f32_bf16 v{vSq[j]}, v{vX+6*j+k}, v{vX+6*j+k}'))
    for rot in (8, 4, 2, 1):
        for j in range(3):
            ln.append(I(f'v_add_f32_dpp v{vSum[j]}, v{vSum[j]}, v{vSum[j]} row_ror:{rot} row_mask:0xf bank_mask:0xf'))
            ln.append(I(f'v_add_f32_dpp v{vSq[j]}, v{vSq[j]}, v{vSq[j]} row_ror:{rot} row_mask:0xf bank_mask:0xf'))
    def ln_stats(S_, Q_, T_):
        out = []
        for s_, t_ in zip(S_, T_): out.append(I(f'v_mul_f32 v{s_}, s{sInv}, v{s_}'))
        for s_, t_ in zip(S_, T_): out.append(I(f'v_mul_f32 v{t_}, v{s_}, v{s_}'))
        for q_, t_ in zip(Q_, T_): out.append(I(f'v_fma_f32 v{q_}, v{q_}, s{sInv}, -v{t_}'))
        for q_ in Q_: out.append(I(f'v_max_f32 v{q_}, 0, v{q_}'))
        for q_ in Q_: out.append(I(f'v_add_f32 v{q_}, {f2u(1e-5)}, v{q_}'))
        for q_ in Q_: out.append(I(f'v_rsq_f32 v{q_}, v{q_}'))
        for s_, q_ in zip(S_, Q_): out.append(I(f'v_mul_f32_e64 v{s_}, -v{s_}, v{q_}'))
        return out
    ln += ln_stats(vSum, vSq, vT[0:3])
    for j in range(3):
        for k in range(6):
            ln.append(I(f'v_lshlrev_b32 v{vF+2*k}, 16, v{vX+6*j+k}'))
            ln.append(I(f'v_and_b32 v{vF+2*k+1}, 0xffff0000, v{vX+6*j+k}'))
        for k in range(6):
            ln.append(I(f'v_pk_fma_f32 {vr(vF+2*k,2)}, {vr(vF+2*k,2)}, {vr(vSq[j],2)}, {vr(vSum[j],2)} op_sel_hi:[1,0,0]'))
        for k in range(6):
            ln.append(I(f'v_cvt_pk_bf16_f32 v{vX+6*j+k}, v{vF+2*k}, v{vF+2*k+1}'))
        for m in range(3):
            ln.append(I(f'ds_write_b64 v{vHw[j]}, {vr(vX+6*j+2*m,2)} offset:{2048*m}', ['himg']))
    nln = 9
    for x in dbg:
        if x.startswith('ln'): nln = int(x[2:])
    d1 = [dq.pop(0) for _ in range(nln)]
    step = (len(ln) - 10) // (len(d1) + 1)
    for n_, it in enumerate(ln):
        emit(it)
        if n_ >= 10 and (n_ - 10) % step == step - 1 and d1:
            for x in d1.pop(0): emit(x)
    while d1:
        for x in d1.pop(0): emit(x)
    stp.stamp('ln1')
    a('s_barrier', muses=['himg', ('W', 0)])
    stp.stamp('bar0')
    def hread(s, tt): return I(f'ds_read_b128 {ar(aH+(tt*6+s)*4,4)}, v{vHr[s&1]} offset:{(tt*6+s)*1024}')
    for tt in range(3): emit(hread(0, tt))
    hrest = [hread(s, tt) for s in range(1, 6) for tt in range(3)]
    DIST = 3
    for x in dbg:
        if x.startswith('dist'): DIST = int(x[4:])
    fcount = [0]
    def trreads(S, ksl, ct):
        b = aW + 4 * (fcount[0] % 5); fcount[0] += 1
        sl = S % NSL
        return b, [I(f'ds_read_b64_tr_b16 {ar(b+2*hf,2)}, v{vTr[sl>>1][ct]} offset:{(sl&1)*SLOT+ksl*12288+hf*6144}', [('rd', S)]) for hf in range(2)]
    def acc(base, ct, tt): return base + (ct * 3 + tt) * 4
    frs = [(S, ksl, ct) for S in range(12) for ksl in range(2) for ct in range(3)]
    fbuf = {}; nread = [0]; passed = [0]
    extra_bar = {}
    def barrier_for(S):
        uses, after = extra_bar.get(S, ((), ()))
        if 'nobar' in dbg and S not in (8, 9): pass
        else: a('s_barrier', muses=[('W', S), ('rd', S - 2)] + list(uses))
        passed[0] = S
        for it in after: emit(it)
    def next_reads(upto, hold):
        if nread[0] > min(upto, len(frs) - 1): return []
        S, ksl, ct = frs[nread[0]]
        if S >= hold: return []
        if S > passed[0]: barrier_for(S)
        b, rd = trreads(S, ksl, ct)
        fbuf[(S, ksl, ct)] = b; nread[0] += 1
        return rd
    def read_ahead(upto, hold):
        while True:
            rd = next_reads(upto, hold)
            if not rd: break
            for it in rd: emit(it)
    def stage(S, fill=(), cinit=False, hold=99):
        part, m = divmod(S, 3)
        base = [accA, accB, accA, accC][part]
        fill = list(fill); nfill = len(fill); done = 0
        gap = 0
        for n in range(6):
            ksl, ct = divmod(n, 3); ks = 2 * m + ksl
            read_ahead(S * 6 + n + 2, hold)
            rd = next_reads(S * 6 + n + 3, hold)
            dms = []
            for q in range(2):
                if dq:
                    nxt = (72 - len(dq)) // 6
                    if nxt - 3 <= passed[0] and (q == 0 or nxt < S + DIST): dms.append(dq.pop(0))
            if 'nodma' in dbg: dms = [[x for x in g if 'buffer' not in x[0]] for g in dms]
            b = fbuf[(S, ksl, ct)]
            def mf(tt):
                d = vr(acc(base, ct, tt), 4)
                c_ = '0' if (ks == 0 and not cinit) else d
                hf_ = ar(aH + (tt * 6 + ks) * 4, 4)
                if part == 2: a(f'v_mfma_f32_16x16x32_bf16 {d}, {hf_}, {ar(b,4)}, {c_}')
                else: a(f'v_mfma_f32_16x16x32_bf16 {d}, {ar(b,4)}, {hf_}, {c_}')
            def fills(k):
                nonlocal done
                while k > 0 and done < nfill:
                    it = fill[done]; done += 1
                    if it is not None: emit(it); k -= 1
            want = (nfill * (n + 1) + 5) // 6
            if rd: emit(rd[0])
            mf(0)
            if rd: emit(rd[1])
            if dms:
                for x in dms[0][:-1]: emit(x)
            else: fills(1)
            mf(1)
            if dms: emit(dms[0][-1])
            else: fills(min(2, want - done))
            if len(dms) > 1:
                for x in dms[1][:-1]: emit(x)
            mf(2)
            if len(dms) > 1: emit(dms[1][-1])
            while done < min(want, nfill):
                it = fill[done]; done += 1
                emit(it)
        while done < nfill:
            emit(fill[done]); done += 1
    def cvts(base, dst_of):
        out = []
        for tt in range(3):
            for ct in range(3):
                s_ = acc(base, ct, tt); d_ = dst_of(tt, ct)
                out.append(I(f'v_cvt_pk_bf16_f32 v{d_}, v{s_}, v{s_+1}'))
                out.append(I(f'v_cvt_pk_bf16_f32 v{d_+1}, v{s_+2}, v{s_+3}'))
        return out
    read_ahead(2, 99)
    for it in hrest[:3]: emit(it)
    stage(0, fill=hrest[3:] + [None] * 6)
    stage(1)
    stage(2)
    stp.stamp('q')
    xr = [I(f'ds_read_b64 {vr(vV+(tt*3+et)*2,2)}, v{vGw[et]} offset:{tt*6144}', ['xrd']) for tt in range(3) for et in range(3)]
    xu = []
    for tt in range(3):
        for et in range(3):
            b = acc(accC, et, tt); x_ = vV + (tt * 3 + et) * 2
            xu += [I(f'v_lshlrev_b32 v{b}, 16, v{x_}'), I(f'v_and_b32 v{b+1}, 0xffff0000, v{x_}'),
                   I(f'v_lshlrev_b32 v{b+2}, 16, v{x_+1}'), I(f'v_and_b32 v{b+3}, 0xffff0000, v{x_+1}')]
    stage(3, fill=xr + [None, None] + cvts(accA, lambda tt, ct: vQ + tt * 6 + ct * 2))
    stage(4, fill=xu[:18])
    stage(5, fill=xu[18:])
    stp.stamp('k')
    f6 = [None, None, None] + cvts(accB, lambda tt, ct: vK + tt * 6 + ct * 2)
    for tt in range(3):
        f6.append(I(f'v_mfma_f32_16x16x32_bf16 {vr(vS+4*tt,4)}, {vr(vK+6*tt,4)}, {vr(vQ+6*tt,4)}, 0'))
    for tt in range(3):
        f6.append(I(f'v_mfma_f32_16x16x16_bf16 {vr(vS+4*tt,4)}, {vr(vK+6*tt+4,2)}, {vr(vQ+6*tt+4,2)}, {vr(vS+4*tt,4)}'))
    f6 += [None, None]
    for tt in range(3):
        f6.append(I(f'ds_write_b128 v{vSw}, {vr(vS+4*tt,4)} offset:{tt*1024}', ['sx']))
    extra_bar[8] = (['sx'], [I(f'ds_read_b128 {vr(vSx+w2*4,4)}, v{vSr} offset:{w2*3072}', ['sxrd']) for w2 in range(4)])
    stage(6, fill=f6)
    f5 = []
    b = vSx
    f5.append(I(f'v_pk_add_f32 {vr(b,2)}, {vr(b,2)}, {vr(b+4,2)}'))
    f5.append(I(f'v_pk_add_f32 {vr(b+2,2)}, {vr(b+2,2)}, {vr(b+6,2)}'))
    f5.append(I(f'v_pk_add_f32 {vr(b+8,2)}, {vr(b+8,2)}, {vr(b+12,2)}'))
    f5.append(I(f'v_pk_add_f32 {vr(b+10,2)}, {vr(b+10,2)}, {vr(b+14,2)}'))
    f5.append(I(f'v_pk_add_f32 {vr(b,2)}, {vr(b,2)}, {vr(b+8,2)}'))
    f5.append(I(f'v_pk_add_f32 {vr(b+2,2)}, {vr(b+2,2)}, {vr(b+10,2)}'))
    m_, m2_ = b + 4, b + 5
    f5.append(I(f'v_max3_f32 v{m_}, v{b}, v{b+1}, v{b+2}'))
    f5.append(I(f'v_max_f32 v{m_}, v{m_}, v{b+3}'))
    f5.append(I(f'v_mov_b32 v{m2_}, v{m_}'))
    f5.append(None)
    f5.append(I(f'v_permlane16_swap_b32 v{m_}, v{m2_}'))
    f5.append(I(f'v_max_f32 v{m_}, v{m_}, v{m2_}'))
    f5.append(I(f'v_mul_f32 v{m_}, s{sC}, v{m_}'))
    for r in range(4): f5.append(I(f'v_fma_f32 v{b+r}, v{b+r}, s{sC}, -v{m_}'))
    for r in range(4): f5.append(I(f'v_exp_f32 v{b+r}, v{b+r}'))
    f5.append(I(f'v_add_f32 v{m_}, v{b}, v{b+1}')); f5.append(I(f'v_add_f32 v{m2_}, v{b+2}, v{b+3}'))
    f5.append(I(f'v_add_f32 v{m_}, v{m_}, v{m2_}'))
    f5.append(I(f'v_mov_b32 v{m2_}, v{m_}'))
    f5.append(None)
    f5.append(I(f'v_permlane16_swap_b32 v{m_}, v{m2_}'))
    f5.append(I(f'v_add_f32 v{m_}, v{m_}, v{m2_}'))
    f5.append(I(f'v_rcp_f32 v{m_}, v{m_}'))
    f5.append(None)
    f5.append(I(f'v_cndmask_b32 v{m_}, 0, v{m_}, s[{sMask}:{sMask+1}]'))
    f5.append(I(f'v_pk_mul_f32 {vr(b,2)}, {vr(b,2)}, {vr(m_,2)} op_sel_hi:[1,0]'))
    f5.append(I(f'v_pk_mul_f32 {vr(b+2,2)}, {vr(b+2,2)}, {vr(m_,2)} op_sel_hi:[1,0]'))
    f5.append(I(f'v_cvt_pk_bf16_f32 v{b+6}, v{b}, v{b+1}'))
    f5.append(I(f'v_cvt_pk_bf16_f32 v{b+7}, v{b+2}, v{b+3}'))
    f5.append(I(f'ds_write_b64 v{vPA[0]}, {vr(b+6,2)}', ['px']))
    stage(7, fill=[None] * 24 + f5[:6], hold=9)
    stage(8, fill=f5[6:], hold=9)
    stp.stamp('v')
    cv = cvts(accA, lambda tt, ct: vV + (tt * 3 + ct) * 2)
    for it in cv: emit(it)
    extra_bar[9] = (['px', 'sxrd'], [I(f'ds_read_b64 {vr(vP+2*tt,2)}, v{vPA[1]} offset:{tt*512}') for tt in range(3)])
    barrier_for(9)
    read_ahead(9 * 6 + 2, 99)
    for tt in range(3):
        for ct in range(3):
            a(f'v_mfma_f32_16x16x16_bf16 {vr(acc(accA,ct,tt),4)}, {vr(vV+(tt*3+ct)*2,2)}, {vr(vP+2*tt,2)}, 0')
    vO = vK
    for tt in range(3):
        for ct in range(3):
            s_ = acc(accA, ct, tt); d_ = vO + (tt * 3 + ct) * 2
            a(f'v_cvt_pk_bf16_f32 v{d_}, v{s_}, v{s_+1}')
            a(f'v_cvt_pk_bf16_f32 v{d_+1}, v{s_+2}, v{s_+3}')
            a(f'ds_write_b64 v{vOw[ct]}, {vr(d_,2)} offset:{tt*6144}', mdefs=['oimg'])
            if dq and (72 - len(dq)) // 6 - 3 <= passed[0]:
                for x in dq.pop(0): emit(x)
    a('s_barrier', muses=['oimg'])
    for s in range(2):
        for tt in range(3): emit(hread(s, tt))
    orest = [hread(s, tt) for s in range(2, 6) for tt in range(3)]
    stp.stamp('oimg')
    stage(9, cinit=True, fill=orest + [None] * 6)
    stage(10, cinit=True)
    stage(11, cinit=True)
    assert not dq
    stp.stamp('oproj')
    sm = [vS + 0, vS + 2, vS + 4]; sq = [vS + 6, vS + 8, vS + 10]
    for tt in range(3):
        regs = [acc(accC, et, tt) + 2 * h for et in range(3) for h in range(2)]
        a(f'v_pk_add_f32 {vr(sm[tt],2)}, {vr(regs[0],2)}, {vr(regs[1],2)}')
        a(f'v_pk_mul_f32 {vr(sq[tt],2)}, {vr(regs[0],2)}, {vr(regs[0],2)}')
    for k in range(1, 6):
        for tt in range(3):
            regs = [acc(accC, et, tt) + 2 * h for et in range(3) for h in range(2)]
            if k >= 2: a(f'v_pk_add_f32 {vr(sm[tt],2)}, {vr(sm[tt],2)}, {vr(regs[k],2)}')
            a(f'v_pk_fma_f32 {vr(sq[tt],2)}, {vr(regs[k],2)}, {vr(regs[k],2)}, {vr(sq[tt],2)}')
    for tt in range(3):
        a(f'v_add_f32 v{sm[tt]}, v{sm[tt]}, v{sm[tt]+1}')
        a(f'v_add_f32 v{sq[tt]}, v{sq[tt]}, v{sq[tt]+1}')
    for tt in range(3): a(f'v_permlane32_swap_b32 v{sm[tt]}, v{sq[tt]}')
    for tt in range(3): a(f'v_add_f32 v{sm[tt]}, v{sm[tt]}, v{sq[tt]}')
    cp = vS + 1
    a(f'v_mov_b32 v{cp}, v{sm[2]}')
    a(f'v_permlane16_swap_b32 v{sm[0]}, v{sm[1]}')
    a(f'v_permlane16_swap_b32 v{sm[2]}, v{cp}')
    a(f'v_add_f32 v{sm[0]}, v{sm[0]}, v{sm[1]}')
    a(f'v_add_f32 v{sm[2]}, v{sm[2]}, v{cp}')
    a(f'ds_write_b32 v{vStW[0]}, v{sm[0]}', mdefs=['st'])
    a(f'ds_write_b32 v{vStW[1]}, v{sm[2]}', mdefs=['st'])
    a('s_barrier', muses=['st'])
    stp.stamp('stbar')
    vR = accA
    for stat in range(2):
        for tt in range(3):
            a(f'ds_read_b128 {vr(vR+(stat*3+tt)*4,4)}, v{vStR} offset:{(stat*48+16*tt)*16}')
    mu = [vS + 0, vS + 2, vS + 4]; rs = [vS + 6, vS + 8, vS + 10]
    for stat, dst in ((0, mu), (1, rs)):
        for tt in range(3):
            b = vR + (stat * 3 + tt) * 4
            a(f'v_pk_add_f32 {vr(b,2)}, {vr(b,2)}, {vr(b+2,2)}')
        for tt in range(3):
            b = vR + (stat * 3 + tt) * 4
            a(f'v_add_f32 v{dst[tt]}, v{b}, v{b+1}')
    vMS = vQ
    st_out = ln_stats(mu, rs, vT[0:3])
    for n_, it in enumerate(st_out):
        emit(it)
        if n_ == 2:
            for tt in range(3): a(f'v_mov_b32 v{vMS+2*tt}, v{mu[tt]}')
        if n_ == 14:
            for tt in range(3): a(f'v_mov_b32 v{vMS+2*tt+1}, v{rs[tt]}')
        if n_ == 17:
            for tt in range(3): a(f'v_mul_f32 v{vMS+2*tt+1}, v{vMS+2*tt+1}, v{rs[tt]}')
    a(f"""
    s_cmp_eq_u32 s{sW}, 1
    s_cselect_b64 vcc, -1, 0
    v_cndmask_b32 v{vMS}, v{vMS}, v{vMS+2}, vcc
    v_cndmask_b32 v{vMS+1}, v{vMS+1}, v{vMS+3}, vcc
    s_cmp_eq_u32 s{sW}, 2
    s_cselect_b64 vcc, -1, 0
    v_cndmask_b32 v{vMS}, v{vMS}, v{vMS+4}, vcc
    v_cndmask_b32 v{vMS+1}, v{vMS+1}, v{vMS+5}, vcc
    """)
    a(f'buffer_store_dwordx2 {vr(vMS,2)}, v{vStG}, s[20:23], 0 offen sc1')
    vPk2 = vV
    for tt in range(3):
        for et in range(3):
            b = acc(accC, et, tt); d_ = vPk2 + (tt * 3 + et) * 2
            a(f'v_pk_fma_f32 {vr(b,2)}, {vr(b,2)}, {vr(rs[tt],2)}, {vr(mu[tt],2)} op_sel_hi:[1,0,0]')
            a(f'v_pk_fma_f32 {vr(b+2,2)}, {vr(b+2,2)}, {vr(rs[tt],2)}, {vr(mu[tt],2)} op_sel_hi:[1,0,0]')
        for et in range(3):
            b = acc(accC, et, tt); d_ = vPk2 + (tt * 3 + et) * 2
            a(f'v_cvt_pk_bf16_f32 v{d_}, v{b}, v{b+1}')
            a(f'v_cvt_pk_bf16_f32 v{d_+1}, v{b+2}, v{b+3}')
            a(f'ds_write_b64 v{vGw[et]}, {vr(d_,2)} offset:{tt*6144}', mdefs=['stg'])
    a('s_barrier', muses=['stg'])
    stp.stamp('stg')
    vOut = accA
    for aa in range(2):
        for p in range(3):
            a(f'ds_read_b128 {vr(vOut+(aa*3+p)*4,4)}, v{vRoL[aa]} offset:{1024*p}')
    for aa in range(2):
        if aa == 1:
            a(f's_cmp_ge_u32 s{sW}, 2')
            a('s_cbranch_scc1 LA_nost')
        for p in range(3):
            so = ['0', f's{sP1}', f's{sP2}'][p]
            a(f'buffer_store_dwordx4 {vr(vOut+(aa*3+p)*4,4)}, v{vRoG[aa]}, s[20:23], {so} offen sc1')
    a('LA_nost:')
    stp.stamp('stores')
    if stamps:
        a('s_waitcnt vmcnt(0)')
        stp.stamp('drained')
    if 'clk' in dbg:
        a('s_waitcnt vmcnt(0)')
        dbg_clock_end(a, sW)
    stp.dump(sW, 's[20:23]', 4)
    build_main.names = stp.names
    a('s_endpgm')
    return finalize(a)

def build_spare():
    a = Asm()
    SWQ, SWO, SWS = 12, 16, 20
    sW, sT0, sT1, sT2, sIdx, sCt, sS = 24, 26, 27, 28, 29, 30, 31
    vLane, vG, vI = 1, 2, 3
    vT = [4, 5, 6, 7, 8]
    vA0, vA1, vB = 9, 10, 11
    vAf = 16
    vBf = 64
    vRaw = 96
    vD = 150
    a(f"""
    s_load_dwordx2 s[12:13], s[0:1], 24
    s_load_dwordx2 s[16:17], s[0:1], 32
    s_load_dwordx2 s[20:21], s[0:1], 56
    v_lshrrev_b32 v{vT[0]}, 6, v0
    v_and_b32 v{vLane}, 63, v0
    v_readfirstlane_b32 s{sW}, v{vT[0]}
    v_lshrrev_b32 v{vG}, 4, v{vLane}
    v_and_b32 v{vI}, 15, v{vLane}
    s_mov_b32 s14, {192*576*2}
    s_mov_b32 s15, 0x00020000
    s_mov_b32 s18, {192*192*2}
    s_mov_b32 s19, 0x00020000
    s_mov_b32 s22, {WSUSE}
    s_mov_b32 s23, 0x00020000
    s_getpc_b64 s[44:45]
    LA_pc:
    s_sub_u32 s44, s44, LA_pc-LA_start
    s_subb_u32 s45, s45, 0
    s_lshl_b32 s{sT0}, s{sW}, 13
    v_lshlrev_b32 v{vT[0]}, 7, v{vLane}
    v_add_u32 v{vT[0]}, s{sT0}, v{vT[0]}
    v_min_u32 v{vT[0]}, LB_end-LA_start, v{vT[0]}
    global_load_dword v200, v{vT[0]}, s[44:45]
    s_sub_u32 s{sIdx}, s2, 216
    s_lshl_b32 s{sIdx}, s{sIdx}, 2
    s_add_u32 s{sIdx}, s{sIdx}, s{sW}
    s_cmp_ge_u32 s{sIdx}, 72
    s_cbranch_scc1 LA_wvo
    """)
    head = finalize(a)
    a = Asm()
    a(f"""
    s_waitcnt lgkmcnt(0)
    s_mul_hi_u32 s{sCt}, s{sIdx}, {(2**32 + 5)//6}
    s_mul_i32 s{sT0}, s{sCt}, 6
    s_sub_u32 s{sS}, s{sIdx}, s{sT0}
    ; A rows: d = 32 s + 8 (i>>2) + 4 b + (i&3)
    v_lshrrev_b32 v{vT[0]}, 2, v{vI}
    v_lshlrev_b32 v{vT[0]}, 3, v{vT[0]}
    v_and_b32 v{vT[1]}, 3, v{vI}
    v_add_u32 v{vT[0]}, v{vT[0]}, v{vT[1]}         ; 8(i>>2)+(i&3)
    s_lshl_b32 s{sT0}, s{sS}, 5
    v_add_u32 v{vT[1]}, s{sT0}, v{vT[0]}
    v_mul_u32_u24 v{vA0}, 1152, v{vT[1]}
    v_lshl_add_u32 v{vA0}, v{vG}, 4, v{vA0}
    v_add_u32 v{vA1}, {4*1152}, v{vA0}
    s_lshr_b32 s{sT0}, s{sCt}, 1
    s_lshl_b32 s{sT0}, s{sT0}, 5
    s_and_b32 s{sT1}, s{sCt}, 1
    s_lshl_b32 s{sT1}, s{sT1}, 2
    s_add_u32 s{sT0}, s{sT0}, s{sT1}
    v_add_u32 v{vT[1]}, s{sT0}, v{vT[0]}
    v_mul_u32_u24 v{vB}, 1152, v{vT[1]}
    v_lshl_add_u32 v{vB}, v{vG}, 4, v{vB}
    """)
    for es in range(6):
        a(f'buffer_load_dwordx4 {vr(vAf+8*es,4)}, v{vA0}, s[12:15], 0 offen offset:{64*es}')
        a(f'buffer_load_dwordx4 {vr(vAf+8*es+4,4)}, v{vA1}, s[12:15], 0 offen offset:{64*es}')
        a(f'buffer_load_dwordx4 {vr(vBf+4*es,4)}, v{vB}, s[12:15], 0 offen offset:{384+64*es}')
    for es in range(6):
        for b in range(2):
            d = vr(vD + 4 * b, 4)
            a(f'v_mfma_f32_16x16x32_bf16 {d}, {vr(vAf+8*es+4*b,4)}, {vr(vBf+4*es,4)}, {"0" if es == 0 else d}')
    a(f's_mov_b32 s{sT0}, {f2u(SCALE_L2E)}')
    for r in range(8): a(f'v_mul_f32 v{vD+r}, s{sT0}, v{vD+r}')
    for r in range(4): a(f'v_cvt_pk_bf16_f32 v{vD+r}, v{vD+2*r}, v{vD+2*r+1}')
    a(f"""
    s_lshl_b32 s{sT0}, s{sIdx}, 10
    s_add_u32 s{sT0}, s{sT0}, {WQKOFF}
    v_lshlrev_b32 v{vT[0]}, 4, v{vLane}
    buffer_store_dwordx4 {vr(vD,4)}, v{vT[0]}, s[20:23], s{sT0} offen
    s_endpgm
    """)
    wqk = finalize(a)
    a = Asm()
    a(f"""
    s_waitcnt lgkmcnt(0)
    s_sub_u32 s{sIdx}, s{sIdx}, 72
    s_mul_hi_u32 s{sCt}, s{sIdx}, {(2**32 + 5)//6}
    s_mul_i32 s{sT0}, s{sCt}, 6
    s_sub_u32 s{sS}, s{sIdx}, s{sT0}
    s_lshl_b32 s{sT0}, s{sS}, 5
    v_add_u32 v{vT[0]}, s{sT0}, v{vI}
    v_mul_u32_u24 v{vA0}, 1152, v{vT[0]}
    v_lshl_add_u32 v{vA0}, v{vG}, 4, v{vA0}
    v_add_u32 v{vA1}, {16*1152}, v{vA0}
    s_mul_hi_u32 s{sT0}, s{sCt}, {(2**32 + 2)//3}      ; w'
    s_mul_i32 s{sT1}, s{sT0}, 3
    s_sub_u32 s{sT1}, s{sCt}, s{sT1}                    ; et
    s_mul_i32 s{sT0}, s{sT0}, 48
    s_cmp_eq_u32 s{sT1}, 2
    s_cselect_b32 s{sT2}, 2, 3
    s_cselect_b32 s{sT1}, 8, s{sT1}
    s_lshl_b32 s{sT1}, s{sT1}, 2
    s_add_u32 s{sT0}, s{sT0}, s{sT1}
    v_lshrrev_b32 v{vT[0]}, 2, v{vI}
    v_lshlrev_b32 v{vT[0]}, s{sT2}, v{vT[0]}
    v_and_b32 v{vT[1]}, 3, v{vI}
    v_add3_u32 v{vT[0]}, v{vT[0]}, v{vT[1]}, s{sT0}     ; e
    v_lshlrev_b32 v{vT[0]}, 1, v{vT[0]}
    v_mul_u32_u24 v{vT[1]}, {8*384}, v{vG}
    v_add_u32 v{vB}, v{vT[0]}, v{vT[1]}
    """)
    for cs in range(6):
        a(f'buffer_load_dwordx4 {vr(vAf+8*cs,4)}, v{vA0}, s[12:15], 0 offen offset:{768+64*cs}')
        a(f'buffer_load_dwordx4 {vr(vAf+8*cs+4,4)}, v{vA1}, s[12:15], 0 offen offset:{768+64*cs}')
    for cs in range(6):
        a(f's_mov_b32 s{sT2}, {cs*32*384}')
        for j in range(8):
            a(f'buffer_load_ushort v{vRaw+8*cs+j}, v{vB}, s[16:19], s{sT2} offen offset:{384*j}')
    for cs in range(6):
        for j in range(4):
            a(f'v_lshl_or_b32 v{vBf+4*cs+j}, v{vRaw+8*cs+2*j+1}, 16, v{vRaw+8*cs+2*j}')
        for b in range(2):
            d = vr(vD + 4 * b, 4)
            a(f'v_mfma_f32_16x16x32_bf16 {d}, {vr(vAf+8*cs+4*b,4)}, {vr(vBf+4*cs,4)}, {"0" if cs == 0 else d}')
    for r in range(4): a(f'v_cvt_pk_bf16_f32 v{vD+r}, v{vD+2*r}, v{vD+2*r+1}')
    a(f"""
    s_lshl_b32 s{sT0}, s{sIdx}, 10
    s_add_u32 s{sT0}, s{sT0}, {WVOOFF}
    v_lshlrev_b32 v{vT[0]}, 4, v{vLane}
    buffer_store_dwordx4 {vr(vD,4)}, v{vT[0]}, s[20:23], s{sT0} offen
    s_endpgm
    """)
    wvo = finalize(a)
    return head + wqk + 'LA_wvo:\n' + wvo

def build_A(name, stamps=False, dbg=()):
    s = f""".globl {name}
.p2align 8
.type {name},@function
{name}:
LA_start:
  s_cmp_ge_u32 s2, 252
  s_cbranch_scc1 LA_end
  s_cmp_ge_u32 s2, 216
  s_cbranch_scc1 LA_spare
"""
    s += build_main(stamps, dbg)
    s += 'LA_spare:\n' + build_spare()
    s += 'LA_end:\n  s_endpgm\n'
    return s
```

```python
from asmb import *
from common import *

WREG = 36864
SL = 12288
GI = 135168
LI = 153600
LX = 161792
LDS_B = 162560
NSTEP = 10

def build_main(fallback=True, stamps=False, dbg=(), D=3, NB=5):
    a = Asm()
    stp = Stamps(a, stamps, 1)
    stp.start()
    if 'clk' in dbg: dbg_clock_start(a)
    sW, sT, sQb, sT0, sT1, sT2, sWB = 24, 25, 26, 27, 28, 29, 30
    sOff, sTB, sEnd, sBeg = 31, 32, 33, 34
    sFb = 35; sOff0 = 43; sIt = 44
    sH = [36, 37, 38, 39]
    sX = [40, 41, 42]
    vLane, vG, vI = 1, 2, 3
    vT = [4, 5, 6, 7, 8, 9]
    vK = [10, 11]; vV = [12, 13, 14, 15]; vD = [16, 17, 18]
    vX1b = 19; vPl = 20; vX1a = 26; vOa = 27
    vJunk = 111
    vNeg = 28; vP = 40; vS = 64; vO = 112
    aG, aF, aL, aOne, aQuart, aId, aW, aPart = 0, 72, 104, 116, 120, 122, 128, 200
    aAdr = 96
    assert NB <= 6
    def Sreg(buf, kt, qt): return vS + buf * 24 + (kt * 3 + qt) * 4
    def Preg(buf, qt): return vP + buf * 12 + qt * 4
    def Oreg(n, qt): return vO + (n * 3 + qt) * 4
    WS = 's[20:23]'; OUT = 's[16:19]'
    a(f"""
    s_load_dwordx2 s[20:21], s[0:1], 56
    s_load_dwordx2 s[16:17], s[0:1], 40
    v_lshrrev_b32 v{vT[0]}, 6, v0
    v_and_b32 v{vLane}, 63, v0
    v_readfirstlane_b32 s{sW}, v{vT[0]}
    v_lshlrev_b32 v{vD[0]}, 4, v{vLane}
    s_and_b32 s{sT}, s2, 7
    s_lshr_b32 s{sQb}, s2, 3
    s_mov_b32 s22, {WSUSE}
    s_mov_b32 s23, 0x00020000
    s_mul_i32 s{sTB}, s{sT}, {TIMG}
    s_mul_i32 s{sWB}, s{sW}, {WREG}
    """)
    for idx in range(2):
        g_, l_ = sH[2*idx], sH[2*idx+1]
        if idx == 0: a(f's_mov_b32 s{sT0}, s{sW}')
        else: a(f's_and_b32 s{sT0}, s{sW}, 1\ns_add_u32 s{sT0}, s{sT0}, 4')
        a(f"""
        s_mul_i32 s{sT1}, s{sQb}, 6
        s_add_u32 s{sT1}, s{sT1}, s{sT0}        ; kb
        s_lshr_b32 s{sT2}, s{sT1}, 2
        s_mul_i32 s{sT2}, s{sT2}, 12288
        s_and_b32 s{sT1}, s{sT1}, 3
        s_lshl_b32 s{sT1}, s{sT1}, 10
        s_add_u32 s{sT2}, s{sT2}, s{sT1}
        s_add_u32 s{g_}, s{sT2}, s{sTB}
        s_and_b32 s{sT1}, s{sT0}, 1
        s_lshl_b32 s{sT1}, s{sT1}, 10
        """)
        if idx == 0:
            a(f"""
            s_lshr_b32 s{sT2}, s{sT0}, 1
            s_mul_i32 s{sT2}, s{sT2}, 6144
            s_add_u32 s{sT1}, s{sT1}, s{sT2}
            s_add_u32 s{l_}, s{sT1}, 12288
            """)
        else:
            a(f's_add_u32 s{l_}, s{sT1}, {12288 + 2*6144}')
    a(f"""
    s_mul_i32 s{sT0}, s{sW}, 6144
    s_add_u32 s{sX[0]}, s{sT0}, {WQKOFF}
    s_add_u32 s{sX[1]}, s{sX[0]}, 24576
    s_add_u32 s{sX[2]}, s{sX[0]}, 49152
    v_add_u32 v{vD[1]}, 4096, v{vD[0]}
    v_add_u32 v{vD[2]}, 8192, v{vD[0]}
    """)
    for idx in range(2):
        g_, l_ = sH[2*idx], sH[2*idx+1]
        for p in range(3):
            a(f's_add_u32 m0, s{l_}, {p*2048}')
            a(f'buffer_load_dwordx4 v{vD[p]}, {WS}, s{g_} offen lds', mdefs=['hq'])
    def wqk_load(s, j): return (f'buffer_load_dwordx4 {ar(aW+(j*6+s)*4,4)}, v{vD[s>>2]}, {WS}, s{sX[j]} offen offset:{(s&3)*1024}', (), ())
    if 'nopf' not in dbg:
        a(f"""
        s_mul_i32 s{sT0}, s{sQb}, 22
        v_add_u32 v{vT[0]}, s{sT0}, v{vLane}
        v_cmp_gt_u32 vcc, 22, v{vLane}
        v_lshlrev_b32 v{vT[0]}, 7, v{vT[0]}
        s_lshr_b32 s{sT0}, s{sW}, 1
        s_lshl_b32 s{sT0}, s{sT0}, 17
        s_add_u32 s{sT0}, s{sT0}, {WQKOFF}
        v_mov_b32 v{vT[1]}, 0x7fffffff
        v_cndmask_b32 v{vT[0]}, v{vT[1]}, v{vT[0]}, vcc
        """)
        a(f'buffer_load_dword v{vJunk}, v{vT[0]}, {WS}, s{sT0} offen')
    npre = 6
    for x in dbg:
        if x.startswith('wpre'): npre = int(x[4:])
    wq_all = [wqk_load(s, j) for s in range(6) for j in range(3)]
    left_items = []
    def L(t_, md=(), mu=()): left_items.append((t_, md, mu))
    for t_ in f"""s_lshr_b32 s{sH[0]}, s{sW}, 1
    s_lshl_b32 s{sH[1]}, s{sH[0]}, 12
    s_lshl_b32 s{sH[0]}, s{sH[0]}, 11
    s_and_b32 s{sH[2]}, s{sW}, 1
    s_lshl_b32 s{sH[2]}, s{sH[2]}, 10
    s_add_u32 s{sH[1]}, s{sH[1]}, s{sH[2]}
    s_add_u32 s{sH[0]}, s{sH[0]}, s{sH[2]}
    s_add_u32 s{sH[3]}, s{sTB}, {40*12288}
    s_add_u32 s{sH[1]}, s{sH[1]}, s{sH[3]}
    s_add_u32 m0, s{sH[0]}, {LI}""".split('\n'): L(t_.strip())
    L(f'buffer_load_dwordx4 v{vD[0]}, {WS}, s{sH[1]} offen lds', ('left',))
    for t_ in f"""s_add_u32 s{sH[1]}, s{sH[3]}, s{sH[2]}
    s_add_u32 s{sH[1]}, s{sH[1]}, 8192
    s_add_u32 m0, s{sH[2]}, {LI + 4096}""".split('\n'): L(t_.strip())
    L(f'buffer_load_dwordx4 v{vD[0]}, {WS}, s{sH[1]} offen lds', ('left',))
    stp.stamp('issued')
    a(f"""
    v_lshrrev_b32 v{vG}, 4, v{vLane}
    v_and_b32 v{vI}, 15, v{vLane}
    v_lshrrev_b32 v{vT[0]}, 3, v{vI}
    v_lshlrev_b32 v{vT[0]}, 10, v{vT[0]}
    v_and_b32 v{vT[1]}, 7, v{vI}
    v_lshl_add_u32 v{vT[0]}, v{vT[1]}, 7, v{vT[0]}
    v_bfe_u32 v{vT[1]}, v{vI}, 1, 2
    v_lshlrev_b32 v{vT[1]}, 1, v{vT[1]}          ; swz(i&7)
    v_xor_b32 v{vT[1]}, v{vT[1]}, v{vG}
    v_lshl_add_u32 v{vT[4]}, v{vT[1]}, 4, v{vT[0]}
    v_xor_b32 v{vT[5]}, 64, v{vT[4]}                   ; odd s
    s_mul_i32 s{sBeg}, s{sW}, {10*SL}
    s_add_u32 s{sBeg}, s{sBeg}, s{sTB}
    s_add_u32 s{sEnd}, s{sBeg}, {10*SL}
    s_mul_hi_u32 s{sT0}, s{sQb}, {(2**32+9)//10}
    s_mul_i32 s{sT0}, s{sT0}, 10
    s_sub_u32 s{sT0}, s{sQb}, s{sT0}          ; rot = qb % 10
    s_mul_i32 s{sT0}, s{sT0}, {SL}
    s_add_u32 s{sOff}, s{sBeg}, s{sT0}
    s_mov_b32 s{sOff0}, s{sOff}
    """)
    a_main = a
    a = Asm()
    a(f"""
    s_mov_b32 s18, {XBYTES}
    s_mov_b32 s19, 0x00020000
    s_mov_b32 s{sFb}, 0
    v_add_u32 v{vK[0]}, s{sWB}, v{vT[4]}
    v_add_u32 v{vK[1]}, s{sWB}, v{vT[5]}
    v_lshrrev_b32 v{vT[0]}, 1, v{vG}
    v_lshlrev_b32 v{vT[0]}, 10, v{vT[0]}
    v_and_b32 v{vT[1]}, 1, v{vG}
    v_lshlrev_b32 v{vT[1]}, 2, v{vT[1]}
    v_lshrrev_b32 v{vT[2]}, 2, v{vI}
    v_add_u32 v{vT[1]}, v{vT[1]}, v{vT[2]}       ; r
    v_lshl_add_u32 v{vT[0]}, v{vT[1]}, 7, v{vT[0]}
    v_bfe_u32 v{vT[1]}, v{vT[1]}, 1, 2
    v_lshlrev_b32 v{vT[1]}, 1, v{vT[1]}          ; swz(r)
    v_bfe_u32 v{vT[2]}, v{vI}, 1, 1
    v_xor_b32 v{vT[1]}, v{vT[1]}, v{vT[2]}       ; swz ^ b
    v_and_b32 v{vT[2]}, 1, v{vI}
    v_lshl_add_u32 v{vT[0]}, v{vT[2]}, 3, v{vT[0]}
    v_add_u32 v{vT[0]}, s{sWB}, v{vT[0]}
    """)
    for jj in range(4):
        a(f"""
        s_xor_b32 s{sT0}, s{sW}, {jj}
        s_lshl_b32 s{sT0}, s{sT0}, 1
        v_xor_b32 v{vT[2]}, s{sT0}, v{vT[1]}
        v_lshl_add_u32 v{vV[jj]}, v{vT[2]}, 4, v{vT[0]}
        """)
    a(f"""
    v_mov_b32 v{vT[0]}, 0x3f803f80
    v_mov_b32 v{vT[1]}, 0x3e803e80
    v_accvgpr_write_b32 a{aOne}, v{vT[0]}
    v_accvgpr_write_b32 a{aOne+1}, v{vT[0]}
    v_accvgpr_write_b32 a{aOne+2}, v{vT[0]}
    v_accvgpr_write_b32 a{aOne+3}, v{vT[0]}
    v_accvgpr_write_b32 a{aQuart}, v{vT[1]}
    v_accvgpr_write_b32 a{aQuart+1}, v{vT[1]}
    v_lshrrev_b32 v{vT[0]}, 2, v{vI}
    v_cmp_eq_u32 vcc, v{vT[0]}, v{vG}
    v_and_b32 v{vT[1]}, 3, v{vI}
    v_mov_b32 v{vT[2]}, 0x3f80
    v_cndmask_b32 v{vT[2]}, 0, v{vT[2]}, vcc
    v_and_b32 v{vT[0]}, 1, v{vT[1]}
    v_lshlrev_b32 v{vT[0]}, 4, v{vT[0]}
    v_lshlrev_b32 v{vT[2]}, v{vT[0]}, v{vT[2]}        ; 0x3f80 << 16*(j&1)
    v_cmp_gt_u32 vcc, 2, v{vT[1]}
    s_lshr_b32 s{sT0}, s{sW}, 1
    s_lshl_b32 s{sT0}, s{sT0}, 10
    v_cndmask_b32 v{vT[0]}, 0, v{vT[2]}, vcc
    v_cndmask_b32 v{vT[1]}, v{vT[2]}, 0, vcc
    v_accvgpr_write_b32 a{aId}, v{vT[0]}
    v_accvgpr_write_b32 a{aId+1}, v{vT[1]}
    v_accvgpr_write_b32 a{aId+2}, v{vT[0]}
    v_accvgpr_write_b32 a{aId+3}, v{vT[1]}
    s_and_b32 s{sT1}, s{sW}, 1
    s_lshl_b32 s{sT1}, s{sT1}, 3
    s_add_u32 s{sT0}, s{sT0}, s{sT1}
    s_add_u32 s{sT1}, s{sT0}, {GI}
    v_add_u32 v{vT[0]}, s{sT1}, v{vD[0]}
    v_add_u32 v{vOa}, s{sT0}, v{vD[0]}
    v_add_u32 v{vT[1]}, {GI}, v{vD[0]}
    """)
    a(f"""
    s_mul_i32 s{sT2}, s{sQb}, 48
    v_add_u32 v{vNeg}, s{sT2}, v{vI}
    s_mul_i32 s{sT1}, s{sT}, 1296
    v_add_u32 v{vNeg+1}, s{sT1}, v{vNeg}                  ; row
    v_lshlrev_b32 v{vNeg+2}, 3, v{vNeg+1}
    v_accvgpr_write_b32 a{aAdr+6}, v{vNeg+2}
    v_mul_u32_u24 v{vX1a}, 384, v{vNeg+1}
    s_mul_i32 s{sT2}, s{sW}, 96
    v_lshlrev_b32 v{vNeg+2}, 4, v{vG}
    v_add3_u32 v{vX1a}, v{vX1a}, v{vNeg+2}, s{sT2}        ; row*384 + 96w + 16g
    v_lshlrev_b32 v{vNeg+2}, 3, v{vG}
    v_sub_u32 v{vX1b}, v{vX1a}, v{vNeg+2}
    s_mul_i32 s{sT2}, s{sW}, 6
    v_add_u32 v{vNeg+3}, s{sT2}, v{vG}                    ; U  (et 0,1)
    v_lshrrev_b32 v{vNeg+4}, 1, v{vG}
    v_add3_u32 v{vNeg+4}, v{vNeg+4}, s{sT2}, 4            ; U2 (et 2)
    v_lshrrev_b32 v{vNeg+5}, 3, v{vNeg+3}
    v_lshlrev_b32 v{vNeg+5}, 12, v{vNeg+5}                ; p*4096
    v_lshrrev_b32 v{vNeg+6}, 3, v{vNeg+4}
    v_lshlrev_b32 v{vNeg+6}, 12, v{vNeg+6}
    v_and_b32 v{vNeg+7}, 1, v{vG}
    v_lshl_add_u32 v{vNeg+6}, v{vNeg+7}, 3, v{vNeg+6}     ; p2*4096 + 8*(g&1)
    v_and_b32 v{vNeg+3}, 7, v{vNeg+3}
    v_and_b32 v{vNeg+4}, 7, v{vNeg+4}
    v_bfe_u32 v{vNeg+7}, v{vNeg}, 1, 2
    v_lshlrev_b32 v{vNeg+7}, 1, v{vNeg+7}
    v_xor_b32 v{vNeg+3}, v{vNeg+3}, v{vNeg+7}
    v_xor_b32 v{vNeg+4}, v{vNeg+4}, v{vNeg+7}
    v_lshl_add_u32 v{vNeg+5}, v{vNeg+3}, 4, v{vNeg+5}
    v_lshl_add_u32 v{vNeg+6}, v{vNeg+4}, 4, v{vNeg+6}
    """)
    for qt in range(3):
        a(f"""
        v_add_u32 v{vNeg+8}, {16*qt}, v{vNeg}
        v_lshrrev_b32 v{vNeg+9}, 5, v{vNeg+8}
        v_mul_u32_u24 v{vNeg+9}, 12288, v{vNeg+9}
        v_and_b32 v{vNeg+8}, 31, v{vNeg+8}
        v_lshl_add_u32 v{vNeg+9}, v{vNeg+8}, 7, v{vNeg+9}
        v_add_u32 v{vNeg+8}, v{vNeg+9}, v{vNeg+5}
        v_add_u32 v{vNeg+9}, v{vNeg+9}, v{vNeg+6}
        v_accvgpr_write_b32 a{aAdr+2*qt}, v{vNeg+8}
        v_accvgpr_write_b32 a{aAdr+2*qt+1}, v{vNeg+9}
        """)
    late_setup = a.ins
    a = a_main
    if 'latefill' not in dbg:
        a.ins.extend(late_setup); late_setup = []
    def dma_panel(j, p):
        sl = j % 3; out = []
        R_ = (('ring', j),)
        out.append((f's_add_u32 m0, s{sWB}, {sl*SL + p*4096}', (), R_))
        for kb in range(4):
            out.append((f'buffer_load_dwordx4 v{vD[p]}, {WS}, s{sOff} offen offset:{kb*1024} lds', (('K', j, p),), (('rdV', j - 3, p),) + R_))
        if p == 2:
            out.append((f's_add_u32 s{sOff}, s{sOff}, {SL}', (), R_))
            out.append((f's_cmp_eq_u32 s{sOff}, s{sEnd}', (), R_))
            out.append((f's_cselect_b32 s{sOff}, s{sBeg}, s{sOff}', (), R_))
        return out
    for _ in range(npre): a(wq_all.pop(0)[0])
    a('s_barrier', muses=['hq'])
    stp.stamp('hqbar')
    vHq = vO
    for s in range(6):
        for qt in range(3):
            base = 12288 + qt * 6144
            a(f'ds_read_b128 {vr(vHq+(qt*6+s)*4,4)}, v{vT[4+(s&1)]} offset:{base+(s>>1)*2048}')
    def Greg(j, qt): return vS + (j * 3 + qt) * 4
    pend = wq_all + left_items + [it for p in range(3) for it in dma_panel(0, p)]
    ring_log = []
    def is_ring(it): return any(isinstance(x, tuple) and x[0] == 'ring' for x in it[2])
    def pop(q, n=1):
        while q and n > 0:
            it = q.pop(0); t_, md, mu = it; a(t_, mdefs=md, muses=mu)
            if is_ring(it): ring_log.append(t_)
            if not t_.startswith('s_'): n -= 1
        while q and q[0][0].startswith('s_') and 'm0' not in q[0][0] and ('cselect' in q[0][0] or 'cmp' in q[0][0] or f's{sOff}, s{sOff}' in q[0][0]):
            it = q.pop(0); t_, md, mu = it; a(t_, mdefs=md, muses=mu)
            if is_ring(it): ring_log.append(t_)
    pop(pend, max(0, 6 - npre))
    cnt = 0
    nl_ = len(late_setup); ldone = 0
    for s in range(6):
        for j in range(3):
            for qt in range(3):
                d = vr(Greg(j, qt), 4)
                a(f'v_mfma_f32_16x16x32_bf16 {d}, {ar(aW+(j*6+s)*4,4)}, {vr(vHq+(qt*6+s)*4,4)}, {"0" if s == 0 else d}')
                cnt += 1
                want = (nl_ * cnt) // 52
                pending_scc = False
                while ldone < min(want, nl_) or (ldone < nl_ and late_setup[ldone].op.startswith('s_cselect')):
                    a.ins.append(late_setup[ldone]); ldone += 1
                if qt == 0 and ('latefill' not in dbg): pop(pend)
                if qt == 2 and (cnt // 3) % 3 != 0 and 'latefill' in dbg: pop(pend)
    while ldone < nl_:
        a.ins.append(late_setup[ldone]); ldone += 1
    for j in range(3):
        for qt in range(3):
            b = Greg(j, qt)
            a(f'v_cvt_pk_bf16_f32 v{b}, v{b}, v{b+1}')
            a(f'v_cvt_pk_bf16_f32 v{b+1}, v{b+2}, v{b+3}')
            a(f'ds_write_b64 v{vT[0]}, {vr(b,2)} offset:{(qt*6+2*j)*1024}', mdefs=['gimg'])
    stp.stamp('G')
    a('s_barrier', muses=['gimg', 'left'])
    a(f"""
    v_add_u32 v{vT[4]}, {LI}, v{vT[4]}
    v_add_u32 v{vT[5]}, {LI}, v{vT[5]}
    """)
    vLk = vO
    pend = pend + [it for p in range(3) for it in dma_panel(1, p)]
    for s in range(6):
        for qt in range(3):
            a(f'ds_read_b128 {ar(aG+(qt*6+s)*4,4)}, v{vT[1]} offset:{(qt*6+s)*1024}', mdefs=['grd'])
        a(f'ds_read_b128 {vr(vLk+4*s,4)}, v{vT[4+(s&1)]} offset:{(s>>1)*2048}')
        if s < 3: pop(pend)
    for s in range(6):
        for qt in range(3):
            d = vr(Sreg(1, 0, qt), 4)
            a(f'v_mfma_f32_16x16x32_bf16 {d}, {vr(vLk+4*s,4)}, {ar(aG+(qt*6+s)*4,4)}, {"0" if s == 0 else d}')
        pop(pend)
    a('s_barrier', muses=['grd'])
    stp.stamp('Sleft')
    m = [vT[0], vT[1], vT[2]]; m2 = [vT[3], vT[4], vT[5]]
    for qt in range(3):
        b = Sreg(1, 0, qt)
        a(f'v_max3_f32 v{m[qt]}, v{b}, v{b+1}, v{b+2}')
        a(f'v_max_f32 v{m[qt]}, v{m[qt]}, v{b+3}')
        a(f'v_mov_b32 v{m2[qt]}, v{m[qt]}')
    pop(pend)
    for qt in range(3): a(f'v_permlane16_swap_b32 v{m[qt]}, v{m2[qt]}')
    for qt in range(3):
        a(f'v_max_f32 v{m[qt]}, v{m[qt]}, v{m2[qt]}')
        a(f'v_mov_b32 v{m2[qt]}, v{m[qt]}')
    pop(pend)
    for qt in range(3): a(f'v_permlane32_swap_b32 v{m[qt]}, v{m2[qt]}')
    for qt in range(3):
        a(f'v_max_f32 v{m[qt]}, v{m[qt]}, v{m2[qt]}')
    for qt in range(3):
        for r in range(4):
            a(f'v_sub_f32 v{vNeg+4*qt+r}, 0, v{m[qt]}')
    stp.stamp('pre')
    if fallback: a('LB_pre:')
    groups = []
    for n in range(12): groups.append(('X', 0, n))
    for n in range(4): groups.append(('P', 0, n))
    for i in range(NSTEP):
        if i + 1 < NSTEP:
            for n in range(12): groups.append(('X', i + 1, n))
        for n in range(12): groups.append(('Y', i, n))
        groups.append(('L', i, 0))
    NG = len(groups)
    gidx = {g: k for k, g in enumerate(groups)}
    last_order = [1, 2, 3, 5, 6, 7, 9, 10, 11, 0, 4, 8]
    def yreg(j, n): return last_order[n] if j == NSTEP - 1 else n
    fbuf = {}; nbuf = [0]
    vLv = vT[5]
    def frag_reads(g):
        kind, j, n = g
        if kind == 'L' or (kind == 'P' and n == 3): return []
        b = aF + 4 * (nbuf[0] % NB); nbuf[0] += 1
        fbuf[g] = b
        sl = j % 3
        tag = ('F', g)
        if kind == 'X':
            s, kt = divmod(n, 2)
            return [(f'ds_read_b128 {ar(b,4)}, v{vK[s&1]} offset:{sl*SL+(s>>1)*4096+kt*2048}', (tag,), (('K', j, s >> 1),))]
        if kind == 'P':
            return [(f'ds_read_b64_tr_b16 {ar(b,2)}, v{vLv} offset:{n*2048}', (tag,), ())]
        R = yreg(j, n); p, jj = divmod(R, 4)
        return [(f'ds_read_b64_tr_b16 {ar(b+2*hf,2)}, v{vV[jj]} offset:{sl*SL+p*4096+hf*2048}', (tag, ('rdV', j, p)), (('K', j, p),)) for hf in range(2)]
    def mfmas(g):
        kind, j, n = g
        out = []
        for qt in range(3):
            if kind == 'X':
                s, kt = divmod(n, 2)
                d = vr(Sreg(j & 1, kt, qt), 4)
                c = vr(vNeg + 4 * qt, 4) if s == 0 else d
                out.append(f'v_mfma_f32_16x16x32_bf16 {d}, {ar(fbuf[g],4)}, {ar(aG+(qt*6+s)*4,4)}, {c}')
            elif kind == 'Y':
                R = yreg(j, n)
                d = vr(Oreg(R, qt), 4)
                c = '0' if (j == 0 and R % 4 != 0) else d
                out.append(f'v_mfma_f32_16x16x32_bf16 {d}, {ar(fbuf[g],4)}, {vr(Preg(j&1,qt),4)}, {c}')
            elif kind == 'L':
                d = ar(aL + 4 * qt, 4)
                out.append(f'v_mfma_f32_16x16x32_bf16 {d}, {ar(aOne,4)}, {vr(Preg(j&1,qt),4)}, {d}')
            elif n < 3:
                out.append(f'v_mfma_f32_16x16x16_bf16 {vr(Oreg(4*n,qt),4)}, {ar(fbuf[g],2)}, {vr(vPl+2*qt,2)}, 0')
            else:
                out.append(f'v_mfma_f32_16x16x16_bf16 {ar(aL+4*qt,4)}, {ar(aQuart,2)}, {vr(vPl+2*qt,2)}, 0')
        return out
    plan = [dict(exp=[], lo=[], mem=[]) for _ in range(NG + 8)]
    def put(k, cls, text, md=(), mu=()): plan[k][cls].append((text, md, mu))
    k0 = gidx[('X', 0, 0)]
    e = 0
    for qt in range(3):
        b = Sreg(1, 0, qt)
        for r in range(4): put(k0 + e // 2, 'lo', f'v_add_f32 v{b+r}, v{b+r}, v{vNeg+4*qt}'); e += 1
    e = 0
    for qt in range(3):
        b = Sreg(1, 0, qt)
        for r in range(4):
            put(k0 + 1 + (e * 7) // 12, 'exp', f'v_exp_f32 v{b+r}, v{b+r}'); e += 1
        put(k0 + 3 + (e * 7) // 12 - 1, 'lo', f'v_cvt_pk_bf16_f32 v{vPl+2*qt}, v{b}, v{b+1}')
        put(k0 + 3 + (e * 7) // 12 - 1, 'lo', f'v_cvt_pk_bf16_f32 v{vPl+2*qt+1}, v{b+2}, v{b+3}')
    put(k0 + 2, 'lo', f'v_subrev_u32 v{vLv}, s{sWB}, v{vV[0]}')
    put(k0 + 2, 'lo', f'v_add_u32 v{vLv}, {LI}, v{vLv}')
    for j in range(NSTEP):
        start = gidx[('X', j, 11)] + 1
        end = gidx[('Y', j, 0)]
        ng = end - start
        buf = j & 1
        items = [(kt, qt, r) for kt in range(2) for qt in range(3) for r in range(4)]
        span = max(ng - 2, 1)
        for e, (kt, qt, r) in enumerate(items):
            k = start + (e * span) // 24
            b = Sreg(buf, kt, qt)
            if 'noexp' not in dbg: put(k, 'exp', f'v_exp_f32 v{b+r}, v{b+r}')
            if r & 1 and 'nocvt' not in dbg:
                pz = Preg(buf, qt) + 2 * kt + (r >> 1)
                put(min(k + 1, end - 1), 'lo', f'v_cvt_pk_bf16_f32 v{pz}, v{b+r-1}, v{b+r}')
    def place_dma(items, ks):
        it = list(items)
        m0 = it.pop(0)
        for q in range(4):
            if q == 0: put(ks[0], 'mem', *m0)
            d = it.pop(0)
            if 'nodma' in dbg: continue
            put(ks[q], 'mem', *d)
        for x in it: put(ks[3] + 1, 'mem', *x)
    kk = k0
    rest = pend
    while rest:
        x = rest.pop(0); put(kk, 'mem', *x)
        if not x[0].startswith('s_'): kk += 1
    k2 = kk
    for p in range(3):
        place_dma(dma_panel(2, p), [k2 + 4 * p + q for q in range(4)])
    for j in range(3, NSTEP):
        b = j - 3
        y0 = gidx[('Y', b, 0)]
        base = y0 - 12
        nb = base + 25
        place_dma(dma_panel(j, 0), [base + 16, base + 18, base + 20, base + 22])
        place_dma(dma_panel(j, 1), [base + 24, nb + 1, nb + 3, nb + 5])
        place_dma(dma_panel(j, 2), [nb + 7, nb + 9, nb + 11, nb + 13])
    kw = gidx[('Y', 7, 2)]
    put(kw, 'mem', f's_mul_i32 s{sT0}, s{sW}, 18432')
    put(kw, 'mem', f's_add_u32 s{sT0}, s{sT0}, {WVOOFF}')
    put(kw, 'mem', f's_add_u32 s{sT1}, s{sT0}, 12288')
    for c in range(18):
        so = sT0 if c < 12 else sT1; cc = c % 12
        put(kw + 1 + c, 'mem', f'buffer_load_dwordx4 {ar(aW+c*4,4)}, v{vD[cc>>2]}, {WS}, s{so} offen offset:{(cc&3)*1024}')
    kx = gidx[('Y', 8, 0)]
    vXr = vS
    vSt = vS + 18
    put(kx - 2, 'lo', f's_mov_b32 s{sX[1]}, {STATOFF}')
    put(kx - 2, 'lo', f'v_accvgpr_read_b32 v{vT[3]}, a{aAdr+6}')
    for qt in range(3):
        kq = kx + 3 * qt
        put(kq - 1, 'lo', f'v_accvgpr_read_b32 v{vT[4]}, a{aAdr+2*qt}')
        put(kq - 1, 'lo', f'v_accvgpr_read_b32 v{vT[5]}, a{aAdr+2*qt+1}')
        put(kq, 'mem', f'buffer_load_dwordx4 {vr(vXr+qt*6,4)}, v{vT[4]}, {WS}, s{sTB} offen')
        put(kq + 1, 'mem', f'buffer_load_dwordx2 {vr(vXr+qt*6+4,2)}, v{vT[5]}, {WS}, s{sTB} offen')
        put(kq + 2, 'mem', f'buffer_load_dwordx2 {vr(vSt+2*qt,2)}, v{vT[3]}, {WS}, s{sX[1]} offen offset:{128*qt}')
    vPw = vT[0]
    ky = gidx[('Y', NSTEP - 1, 0)]
    put(ky - 1, 'lo', f'v_lshlrev_b32 v{vPw}, 3, v{vLane}')
    put(ky - 1, 'lo', f'v_add_u32 v{vPw}, s{sWB}, v{vPw}')
    for n in range(9):
        R = last_order[n]; p, jj = divmod(R, 4)
        for qt in range(3):
            o = Oreg(R, qt)
            put(ky + n + 2, 'lo', f'v_cvt_pk_bf16_f32 v{o}, v{o}, v{o+1}')
            put(ky + n + 2, 'lo', f'v_cvt_pk_bf16_f32 v{o+1}, v{o+2}, v{o+3}')
            put(ky + n + 2, 'lo', f'ds_write_b64 v{vPw}, {vr(o,2)} offset:{SL+((jj-1)*9+p*3+qt)*512}', ('part',), ())
    for k in range(D):
        for t_, md, mu in frag_reads(groups[k]): a(t_, mdefs=md, muses=mu)
    def emit(lst):
        for t_, md, mu in lst: a(t_, mdefs=md, muses=mu)
    for k, g in enumerate(groups):
        kind, j, n = g
        if kind == 'Y' and n == 0 and j in (0, 4, 8): stp.stamp(f'Y{j}')
        rd = frag_reads(groups[k + D]) if k + D < NG else []
        if 'nords' in dbg: rd = []
        mf = mfmas(g)
        pl = plan[k]
        ex, lo, mem = list(pl['exp']), list(pl['lo']), list(pl['mem'])
        emit(rd[:1])
        mu0 = []
        if 'pairwait' in dbg and k % 2 == 0 and k + 1 < NG and groups[k + 1] in fbuf: mu0 = [('F', groups[k + 1])]
        a(mf[0], muses=mu0)
        emit(ex[:1]); ex = ex[1:]
        if not pl['exp']:
            emit(lo[:2]); lo = lo[2:]
        a(mf[1])
        emit(rd[1:])
        emit(mem)
        emit(ex)
        emit(lo)
        a(mf[2])
    for k in range(NG, NG + 8):
        emit(plan[k]['exp']); emit(plan[k]['mem']); emit(plan[k]['lo'])
    stp.stamp('main')
    a(f"""
    v_lshlrev_b32 v{vT[1]}, 4, v{vI}
    s_lshl_b32 s{sT0}, s{sW}, 2
    s_add_u32 s{sT0}, s{sT0}, {LX}
    v_add_u32 v{vT[2]}, s{sT0}, v{vT[1]}
    v_add_u32 v{vT[1]}, {LX}, v{vT[1]}
    """)
    for qt in range(3):
        a(f'v_accvgpr_read_b32 v{vT[3]+qt}, a{aL+4*qt}')
    for qt in range(3):
        a(f'ds_write_b32 v{vT[2]}, v{vT[3]+qt} offset:{qt*256}', mdefs=['part'])
    vPr = [vT[3], vT[4], vT[5]]
    for jj in range(1, 4):
        a(f"""
        s_xor_b32 s{sT0}, s{sW}, {jj}
        s_mul_i32 s{sT0}, s{sT0}, {WREG}
        v_lshlrev_b32 v{vPr[jj-1]}, 3, v{vLane}
        v_add_u32 v{vPr[jj-1]}, s{sT0}, v{vPr[jj-1]}
        """)
    def Yreg(et, qt):
        k = et * 3 + qt
        return vS + 24 + 4 * k if k < 6 else vP + 4 * (k - 6)
    for qt in range(3):
        x = vXr + qt * 6
        for k in range(6):
            et, r = (k >> 1, 2 * (k & 1))
            a(f'v_lshlrev_b32 v{Yreg(et,qt)+r}, 16, v{x+k}')
            a(f'v_and_b32 v{Yreg(et,qt)+r+1}, 0xffff0000, v{x+k}')
        for k in range(6):
            et, r = (k >> 1, 2 * (k & 1))
            y = vr(Yreg(et, qt) + r, 2)
            a(f'v_pk_fma_f32 {y}, {y}, {vr(vSt+2*qt,2)}, {vr(vSt+2*qt,2)} op_sel:[0,1,0] op_sel_hi:[1,1,0]')
    a('s_barrier', muses=['part'])
    stp.stamp('bar1')
    vLr = vP + 12
    for qt in range(3):
        a(f'ds_read_b128 {vr(vLr+4*qt,4)}, v{vT[1]} offset:{qt*256}')
    def part_reads(qt):
        out = []
        for p in range(3):
            for jj in range(1, 4):
                b = aPart + (qt * 3 + p) * 6 + 2 * (jj - 1)
                out.append(f'ds_read_b64 {ar(b,2)}, v{vPr[jj-1]} offset:{SL+((jj-1)*9+p*3+qt)*512}')
        return out
    for t_ in part_reads(0): a(t_)
    prq = part_reads(1) + part_reads(2)
    vRinv = [vPl, vPl + 2, vPl + 4]
    for qt in range(3):
        b = vLr + 4 * qt
        a(f'v_add_f32 v{b}, v{b}, v{b+1}')
        a(f'v_add_f32 v{b+2}, v{b+2}, v{b+3}')
    for qt in range(3):
        b = vLr + 4 * qt
        a(f'v_add_f32 v{b}, v{b}, v{b+2}')
    if fallback:
        a(f"""
        v_add_f32 v{vLr+1}, v{vLr}, v{vLr+4}
        s_mov_b32 s{sT0}, {f2u(2.0**100)}
        v_add_f32 v{vLr+1}, v{vLr+1}, v{vLr+8}
        v_cmp_nle_f32 vcc, v{vLr+1}, s{sT0}
        """.replace(f'v_cmp_nle_f32 vcc, v{vLr+1}, s{sT0}', f'v_cmp_nge_f32 vcc, s{sT0}, v{vLr+1}'))
        a(f"""
        s_cmp_eq_u32 s{sFb}, 0
        s_cselect_b64 s[46:47], vcc, 0
        s_cmp_lg_u64 s[46:47], 0
        s_cbranch_scc1 LB_safe
        """)
    for qt in range(3):
        a(f'v_rcp_f32 v{vRinv[qt]}, v{vLr+4*qt}')
    xinit = []
    post = []
    nearly = 30
    def drain(lst, n):
        for _ in range(n):
            if lst:
                t_ = lst.pop(0)
                if t_.startswith('WRITE '): a(t_[6:], mdefs=['oimg'])
                else: a(t_)
    for qt in range(3):
        for p in range(3):
            d = vr(Oreg(4 * p, qt), 4); b = aPart + (qt * 3 + p) * 6
            a(f'v_mfma_f32_16x16x32_bf16 {d}, {ar(aId,4)}, {ar(b,4)}, {d}')
            drain(prq, 2 if post else 3)
            if post: drain(post, 2)
        for p in range(3):
            d = vr(Oreg(4 * p, qt), 4); b = aPart + (qt * 3 + p) * 6
            a(f'v_mfma_f32_16x16x16_bf16 {d}, {ar(aId,2)}, {ar(b+4,2)}, {d}')
            if qt == 0: drain(prq, 1)
            if post: drain(post, 3)
        md = []
        for p in range(3):
            o = Oreg(4 * p, qt)
            post.append(f'v_pk_mul_f32 {vr(o,2)}, {vr(o,2)}, {vr(vRinv[qt],2)} op_sel_hi:[1,0]')
            post.append(f'v_pk_mul_f32 {vr(o+2,2)}, {vr(o+2,2)}, {vr(vRinv[qt],2)} op_sel_hi:[1,0]')
        for p in range(3):
            o = Oreg(4 * p, qt)
            post.append(f'v_cvt_pk_bf16_f32 v{o}, v{o}, v{o+1}')
            post.append(f'v_cvt_pk_bf16_f32 v{o+1}, v{o+2}, v{o+3}')
            off = (6 * qt + 2 * p) * 1024 if qt < 2 else 36864 + 2 * p * 1024
            post.append(f'WRITE ds_write_b64 v{vOa}, {vr(o,2)} offset:{off}')
    rest = post
    drain(rest, len(rest))
    a(f's_movk_i32 s{sT0}, 6144')
    a(f's_movk_i32 s{sT1}, 12288')
    a('s_barrier', muses=['oimg'])
    stp.stamp('bar2')
    oreads_first = True
    for qt in range(3):
        for s in range(6):
            off = (6 * qt + s) * 1024 if qt < 2 else 36864 + s * 1024
            a(f'ds_read_b128 {ar(aG+(qt*6+s)*4,4)}, v{vD[0]} offset:{off}')
    fin = []
    for qt in range(3):
        cnt = 0
        for s in range(6):
            for et in range(3):
                d = vr(Yreg(et, qt), 4)
                if xinit and qt == 0 and s == 0 and et == 0: drain(xinit, len(xinit))
                a(f'v_mfma_f32_16x16x32_bf16 {d}, {ar(aW+(et*6+s)*4,4)}, {ar(aG+(qt*6+s)*4,4)}, {d}')
                cnt += 1
                if cnt >= 6 and fin: a(fin.pop(0))
        assert not fin
        x = vXr + qt * 6
        for k in range(6):
            et, r = (k >> 1, 2 * (k & 1))
            fin.append(f'v_cvt_pk_bf16_f32 v{x+k}, v{Yreg(et,qt)+r}, v{Yreg(et,qt)+r+1}')
        so = ['0', f's{sT0}', f's{sT1}'][qt]
        fin.append(f'buffer_store_dwordx4 {vr(x,4)}, v{vX1a}, {OUT}, {so} offen')
        fin.append(f'buffer_store_dwordx2 {vr(x+4,2)}, v{vX1b}, {OUT}, {so} offen offset:64')
    stp.stamp('oproj')
    while fin: a(fin.pop(0))
    stp.stamp('stores')
    if stamps:
        a('s_waitcnt vmcnt(0)')
        stp.stamp('drained')
    if 'clk' in dbg:
        a('s_waitcnt vmcnt(0)')
        dbg_clock_end(a, sW)
    stp.dump(sW, WS, 4)
    a('s_endpgm')
    build_main.names = stp.names
    main = finalize(a)
    if not fallback: return main
    a = Asm()
    vA = [vT[0], vT[1]]; vMx = [vT[2], vT[3], vT[4]]
    vKf = vO
    a(f"""
    LB_safe:
    s_waitcnt vmcnt(0) lgkmcnt(0)
    s_barrier
    v_subrev_u32 v{vA[0]}, s{sWB}, v{vK[0]}
    v_subrev_u32 v{vA[1]}, s{sWB}, v{vK[1]}
    v_mov_b32 v{vMx[0]}, 0
    v_mov_b32 v{vMx[1]}, 0
    v_mov_b32 v{vMx[2]}, 0
    s_mov_b32 s{sIt}, 0
    LB_mx:
    s_lshr_b32 s{sT0}, s{sIt}, 1
    s_mul_i32 s{sT0}, s{sT0}, {SL}
    s_and_b32 s{sT1}, s{sIt}, 1
    s_lshl_b32 s{sT1}, s{sT1}, 11
    s_add_u32 s{sT0}, s{sT0}, s{sT1}
    s_add_u32 s{sT0}, s{sT0}, s{sBeg}
    s_add_u32 s{sT1}, s{sT0}, 4096
    s_add_u32 s{sT2}, s{sT0}, 8192
    """)
    for s_ in range(6):
        a(f'buffer_load_dwordx4 {vr(vKf+4*s_,4)}, v{vA[s_&1]}, {WS}, s{[sT0, sT1, sT2][s_>>1]} offen')
    for s_ in range(6):
        for qt in range(3):
            d = vr(Sreg(0, 0, qt), 4)
            a(f'v_mfma_f32_16x16x32_bf16 {d}, {vr(vKf+4*s_,4)}, {ar(aG+(qt*6+s_)*4,4)}, {vr(vNeg+4*qt,4) if s_ == 0 else d}')
    for qt in range(3):
        b = Sreg(0, 0, qt)
        a(f'v_max3_f32 v{vMx[qt]}, v{vMx[qt]}, v{b}, v{b+1}')
        a(f'v_max3_f32 v{vMx[qt]}, v{vMx[qt]}, v{b+2}, v{b+3}')
    a(f"""
    s_add_u32 s{sIt}, s{sIt}, 1
    s_cmp_lt_u32 s{sIt}, 20
    s_nop 7
    s_cbranch_scc1 LB_mx
    """)
    seg1 = finalize(a)
    a = Asm()
    m2 = [vS, vS + 1, vS + 2]
    for qt in range(3): a(f'v_mov_b32 v{m2[qt]}, v{vMx[qt]}')
    for qt in range(3): a(f'v_permlane16_swap_b32 v{vMx[qt]}, v{m2[qt]}')
    for qt in range(3):
        a(f'v_max_f32 v{vMx[qt]}, v{vMx[qt]}, v{m2[qt]}')
        a(f'v_mov_b32 v{m2[qt]}, v{vMx[qt]}')
    for qt in range(3): a(f'v_permlane32_swap_b32 v{vMx[qt]}, v{m2[qt]}')
    for qt in range(3): a(f'v_max_f32 v{vMx[qt]}, v{vMx[qt]}, v{m2[qt]}')
    a(f"""
    v_lshlrev_b32 v{vS+3}, 4, v{vI}
    s_lshl_b32 s{sT0}, s{sW}, 2
    s_add_u32 s{sT0}, s{sT0}, {LX}
    v_add_u32 v{vS+4}, s{sT0}, v{vS+3}
    v_add_u32 v{vS+3}, {LX}, v{vS+3}
    """)
    for qt in range(3): a(f'ds_write_b32 v{vS+4}, v{vMx[qt]} offset:{qt*256}', mdefs=['mx'])
    a('s_barrier', muses=['mx'])
    for qt in range(3): a(f'ds_read_b128 {vr(vS+8+4*qt,4)}, v{vS+3} offset:{qt*256}')
    for qt in range(3):
        b = vS + 8 + 4 * qt
        a(f'v_max3_f32 v{b}, v{b}, v{b+1}, v{b+2}')
        a(f'v_max_f32 v{b}, v{b}, v{b+3}')
        for r in range(4): a(f'v_sub_f32 v{vNeg+4*qt+r}, v{vNeg+4*qt+r}, v{b}')
    a(f"""
    v_add_u32 v{vA[0]}, {LI}, v{vA[0]}
    v_add_u32 v{vA[1]}, {LI}, v{vA[1]}
    """)
    for s_ in range(6):
        a(f'ds_read_b128 {vr(vKf+4*s_,4)}, v{vA[s_&1]} offset:{(s_>>1)*2048}')
    for s_ in range(6):
        for qt in range(3):
            d = vr(Sreg(1, 0, qt), 4)
            a(f'v_mfma_f32_16x16x32_bf16 {d}, {vr(vKf+4*s_,4)}, {ar(aG+(qt*6+s_)*4,4)}, {"0" if s_ == 0 else d}')
    a(f's_mov_b32 s{sOff}, s{sOff0}')
    for t_ in ring_log:
        if 'm0' in t_ and 's_add' in t_: a(t_); a('s_nop 0')
        else: a(t_)
    a(f"""
    s_mov_b32 s{sFb}, 1
    s_waitcnt vmcnt(0) lgkmcnt(0)
    s_barrier
    s_nop 15
    s_branch LB_pre
    """)
    return main + seg1 + finalize(a)

def build_B(name, stamps=False, dbg=(), **kw):
    s = f""".globl {name}
.p2align 8
.type {name},@function
{name}:
  s_cmp_ge_u32 s2, 216
  s_cbranch_scc1 LB_end
"""
    if 'delay' in dbg:
        s += "  s_movk_i32 s4, 500\nLB_delay:\n  s_nop 7\n  s_sub_u32 s4, s4, 1\n  s_cmp_lg_u32 s4, 0\n  s_cbranch_scc1 LB_delay\n"
    s += build_main(fallback=('nofb' not in dbg), stamps=stamps, dbg=dbg, **kw)
    s += 'LB_end:\n  s_endpgm\n'
    return s
```

```python
import sys
sys.path.insert(0, 'gen')
from common import *
import gen_a
DESC = """.p2align 6
.amdhsa_kernel {name}
  .amdhsa_next_free_vgpr {vgpr}
  .amdhsa_next_free_sgpr {sgpr}
  .amdhsa_accum_offset {acc}
  .amdhsa_group_segment_fixed_size 0
  .amdhsa_kernarg_size 64
  .amdhsa_user_sgpr_count 2
  .amdhsa_user_sgpr_kernarg_segment_ptr 1
  .amdhsa_system_sgpr_workgroup_id_x 1
.end_amdhsa_kernel
"""
HEADER = """; TimeSformer block (temporal attention + spatial attention), gfx950, hand-written via a Python generator.
"""
def make(kernels, fn, code_span=0x8000):
    s = HEADER
    for name, grid, lds, text, vgpr, acc in kernels:
        s += f'; @launch kernel={name} grid=({grid},1,1) block=(256,1,1) lds={lds}\n'
    s += '.amdgcn_target "amdgcn-amd-amdhsa--gfx950"\n.text\n'
    s += '.set CODE_SPAN, 0x%x\n' % code_span
    seen = []
    for name, grid, lds, text, vgpr, acc in kernels:
        if name in seen: continue
        seen.append(name)
        s += text
    s += '.section .rodata,"a"\n'
    seen = []
    for name, grid, lds, text, vgpr, acc in kernels:
        if name in seen: continue
        seen.append(name)
        s += DESC.format(name=name, vgpr=vgpr, sgpr=96, acc=acc)
    open(fn, 'w').write(s)
if __name__ == '__main__':
    NA = 'standalone__video_timesformer__vision_kernel'
    A = (NA, 252, gen_a.LDS_A, gen_a.build_A(NA), 512, 256)
    make([A], 'a_only.s')
    try:
        import gen_b
        NB = 'standalone__video_timesformer__vision_b_kernel'
        B = (NB, 216, gen_b.LDS_B, gen_b.build_B(NB), 512, 256)
        make([A, B], 'ab.s')
    except ImportError as e:
        print('no B yet', e)
    As = (NA, 252, gen_a.LDS_A, gen_a.build_A(NA, True), 512, 256)
    Bs = (NB, 216, gen_b.LDS_B, gen_b.build_B(NB, True), 512, 256)
    make([As, Bs], 'ab_st.s')
    import json
    json.dump([gen_a.build_main.names, gen_b.build_main.names], open('ab_st.json', 'w'))
    Ac = (NA, 252, gen_a.LDS_A, gen_a.build_A(NA, False, ('clk',)), 512, 256)
    Bc = (NB, 216, gen_b.LDS_B, gen_b.build_B(NB, False, ('clk',)), 512, 256)
    make([Ac, Bc], 'ab_clk.s')
    Bdl = (NB, 216, gen_b.LDS_B, gen_b.build_B(NB, False, ('delay', 'clk')), 512, 256)
    make([A, Bdl], 'ab_delay.s')
    An = (NA, 252, gen_a.LDS_A, gen_a.build_A(NA, False, ('nocpf',)), 512, 256)
    make([An, B], 'ab_nocpf.s')
    for nm, dbg in {'w6': ('wpre6',), 'w9': ('wpre9',), 'w12': ('wpre12',), 'w3': ('wpre3',)}.items():
        Bd = (NB, 216, gen_b.LDS_B, gen_b.build_B(NB, True, dbg), 512, 256)
        make([As, Bd], f'ab_st_{nm}.s')
        json.dump([gen_a.build_main.names, gen_b.build_main.names], open(f'ab_st_{nm}.json', 'w'))
    EMPTY = lambda n: (n, 256, 0, f".globl {n}\n.p2align 8\n.type {n},@function\n{n}:\n  s_endpgm\n", 8, 8)
    make([A, B, EMPTY('e1_kernel')], 'ab_e1.s')
    make([A, B, EMPTY('e1_kernel'), EMPTY('e1_kernel'), EMPTY('e1_kernel')], 'ab_e3.s')
```

```python
T, N, C = 8, 1296, 192
XBYTES = T * N * C * 2
HOFF = 0
X1OFF = 0x400000
STATOFF = 0x400000
WQKOFF = 0x800000
WVOOFF = 0x8A0000
WVTOFF = 0x8C0000
WIMG = 73728
WSUSE = 0x1000000
STAMPOFF = 0x900000
TIMG = 41 * 12288
XROW = N * C * 2
SCALE_L2E = (C ** -0.5) * 1.4426950408889634
import struct
def f2u(f): return struct.unpack('<I', struct.pack('<f', f))[0]
def vr(b, n=1): return f'v{b}' if n == 1 else f'v[{b}:{b+n-1}]'
def ar(b, n=1): return f'a{b}' if n == 1 else f'a[{b}:{b+n-1}]'
def sr(b, n=1): return f's{b}' if n == 1 else f's[{b}:{b+n-1}]'
def srd(a, base, nbytes):
    a(f's_mov_b32 s{base+2}, {nbytes}\ns_mov_b32 s{base+3}, 0x00020000')

class Stamps:
    def __init__(self, a, enable, kernel_idx):
        self.a, self.en, self.k, self.n = a, enable, kernel_idx, 0
        self.names = []; self.only = None
    def start(self):
        if not self.en: return
        self.a('s_memrealtime s[56:57]')
        self.stamp('start')
    def stamp(self, name):
        if not self.en: return
        if self.only is not None and name not in self.only: return
        self.a(f's_memtime s[{60+2*self.n}:{61+2*self.n}]'); self.n += 1; self.names.append(name)
        assert self.n <= 16
    def dump(self, sW, srd, vtmp):
        if not self.en: return
        a = self.a
        a('s_memrealtime s[58:59]')
        a('s_waitcnt lgkmcnt(0)')
        a(f's_lshl_b32 s93, s2, 2\ns_add_u32 s93, s93, s{sW}\ns_lshl_b32 s93, s93, 7\ns_add_u32 s93, s93, {STAMPOFF + self.k*0x40000}')
        vals = ['s56', 's58'] + [f's{60+2*i}' for i in range(self.n)]
        a(f'v_mov_b32 v{vtmp}, 0')
        for i, v in enumerate(vals):
            a(f'v_mov_b32 v{vtmp+1}, {v}')
            a(f'buffer_store_dword v{vtmp+1}, v{vtmp}, {srd}, s93 offen offset:{4*i}')

def dbg_clock_start(a):
    a('s_memtime s[80:81]\ns_memrealtime s[82:83]')
def dbg_clock_end(a, sW):
    a(f"""
    s_memtime s[84:85]
    s_memrealtime s[86:87]
    s_load_dwordx2 s[88:89], s[0:1], 48
    s_waitcnt lgkmcnt(0)
    s_sub_u32 s84, s84, s80
    s_sub_u32 s86, s86, s82
    s_mov_b32 s90, 256
    s_mov_b32 s91, 0x00020000
    s_lshl_b32 s92, s2, 3
    s_cmp_lt_u32 s2, 8
    s_cselect_b32 s92, s92, 0x7ffff00
    s_cmp_eq_u32 s{sW}, 0
    s_cselect_b32 s92, s92, 0x7ffff00
    v_mov_b32 v4, s84
    v_mov_b32 v5, s86
    v_mov_b32 v6, s92
    s_nop 4
    buffer_store_dwordx2 v[4:5], v6, s[88:91], 0 offen
    """)

CNT_A = 216
CNT_W = 18
NSPARE = 40
```

```python
from asmb import *
from common import *

SLOT = 24576
NSL = 5
NST = 6
HL = NSL * SLOT
SX = HL
XI = HL + 18432
ST = XI + 18432
PX = ST + 1536
LDS_A = PX + 1536

def build_main(stamps=False, dbg=(), fused=False):
    a = Asm()
    stp = Stamps(a, stamps, 0)
    if fused: stp.only = ('start', 'xarr', 'ln1', 'v', 'Bsetup', 'drained', 'synced', 'hqbar', 'G', 'pre', 'Y0', 'Y8', 'main', 'bar2', 'end')
    stp.start()
    if 'clk' in dbg: dbg_clock_start(a)
    sW, sN0, sT0, sT1, sT2, sWB = 24, 25, 26, 27, 28, 29
    sC = 30; sMask = 32
    sP1, sP2 = 34, 35
    sInv = 38; sSo = 39; sM = 43
    vLane, vG, vI = 1, 2, 3
    vT = [4, 5, 6, 7, 8]
    vWq, vWo = 9, 10
    vTr = [[11 + 3 * st_ + ct for ct in range(3)] for st_ in range(3)]
    vHr = [20, 21]
    vXs = 22; vXl = [23, 24, 25]; vHw = [26, 27, 28]
    vJunk = [29, 30]
    vOw = [33, 34, 35]; vSw = 36; vSr = 37; vStW = [38, 39]; vStR = 40
    vGw = [41, 42, 43]; vRoL = [44, 45]; vRoG = [46, 47]; vStG = 48
    vPA = [31, 32]
    vX = 50
    vP = 50
    accA, accB = 68, 104
    vQ, vK, vV = 140, 158, 176
    vS = 194
    vSx = 140
    accC = 220
    vCw = 206; vD2 = [207, 208, 209]
    aH = 0; aW = 72
    def I(text, md=(), mu=()): return (text, md, mu)
    def emit(it):
        if it is not None: a(it[0], mdefs=it[1], muses=it[2])

    if 'nocpf' not in dbg:
        a(f"""
        s_cmp_ge_u32 s2, {NSPARE + 8}
        s_cbranch_scc1 LA_nocpf
        s_getpc_b64 s[44:45]
        LA_pc0:
        s_sub_u32 s44, s44, LA_pc0-LA_start
        s_subb_u32 s45, s45, 0
        v_lshlrev_b32 v{vT[0]}, 7, v0
        v_add_u32 v{vT[1]}, 32768, v{vT[0]}
        v_min_u32 v{vT[0]}, LB_end-LA_start-4, v{vT[0]}
        v_min_u32 v{vT[1]}, LB_end-LA_start-4, v{vT[1]}
        global_load_dword v210, v{vT[0]}, s[44:45]
        global_load_dword v211, v{vT[1]}, s[44:45]
        LA_nocpf:
        """)
    a(f"""
    s_load_dwordx2 s[8:9], s[0:1], 0
    s_load_dwordx2 s[12:13], s[0:1], 8
    s_load_dwordx2 s[20:21], s[0:1], 56
    s_load_dwordx2 s[52:53], s[0:1], 48
    v_lshrrev_b32 v{vT[0]}, 6, v0
    v_and_b32 v{vLane}, 63, v0
    v_readfirstlane_b32 s{sW}, v{vT[0]}
    v_lshrrev_b32 v{vT[0]}, 3, v{vLane}            ; t
    v_and_b32 v{vT[1]}, 7, v{vLane}                ; slot
    v_xor_b32 v{vT[1]}, v{vT[1]}, v{vT[0]}
    v_mul_u32_u24 v{vXs}, {XROW}, v{vT[0]}
    v_lshl_add_u32 v{vXs}, v{vT[1]}, 4, v{vXs}
    s_sub_u32 s{sM}, s2, {NSPARE}
    s_mul_i32 s{sN0}, s{sM}, 6
    s_mov_b32 s10, {XBYTES}
    s_mov_b32 s11, 0x00020000
    s_mov_b32 s14, {192*576*2}
    s_mov_b32 s15, 0x00020000
    s_mov_b32 s54, 256
    s_mov_b32 s55, 0x00020000
    s_mov_b32 s22, {WSUSE}
    s_mov_b32 s23, 0x00020000
    s_mul_i32 s{sT2}, s{sN0}, 384
    """)
    for k in range(5):
        a(f's_add_u32 s{sT0}, s{sW}, {4*k}')
        if k == 4: a(f's_min_u32 s{sT0}, s{sT0}, 17')
        a(f"""
        s_lshl_b32 s{sT1}, s{sT0}, 10
        s_add_u32 m0, s{sT1}, {XI}
        s_lshl_b32 s{sT0}, s{sT0}, 7
        s_add_u32 s{sT0}, s{sT0}, s{sT2}
        """)
        a(f'buffer_load_dwordx4 v{vXs}, s[8:11], s{sT0} offen lds', mdefs=['x'])
    a(f"""
    s_lshr_b32 s{sT0}, s{sM}, 3
    s_mul_i32 s{sT0}, s{sT0}, 12288
    v_lshlrev_b32 v{vT[1]}, 7, v0
    v_add_u32 v{vT[1]}, s{sT0}, v{vT[1]}
    v_cmp_gt_u32 vcc, 96, v0
    v_mov_b32 v{vT[2]}, 0x7ffffff0
    v_lshrrev_b32 v{vG}, 4, v{vLane}
    v_and_b32 v{vI}, 15, v{vLane}
    v_cndmask_b32 v{vT[1]}, v{vT[2]}, v{vT[1]}, vcc
    """)
    a(f'buffer_load_dword v{vJunk[0]}, v{vT[1]}, s[12:15], 0 offen')
    stp.stamp('issued')
    a(f"""
    v_lshrrev_b32 v{vT[0]}, 3, v{vLane}            ; r
    v_bfe_u32 v{vT[3]}, v{vLane}, 4, 2             ; (r>>1)&3
    v_lshlrev_b32 v{vT[3]}, 1, v{vT[3]}
    v_and_b32 v{vT[4]}, 7, v{vLane}
    v_xor_b32 v{vT[3]}, v{vT[3]}, v{vT[4]}         ; u
    s_lshl_b32 s{sT0}, s{sW}, 3
    v_add_u32 v{vT[0]}, s{sT0}, v{vT[0]}           ; 8w + r
    v_mul_u32_u24 v{vWq}, 1152, v{vT[0]}
    v_lshl_add_u32 v{vWq}, v{vT[3]}, 4, v{vWq}
    s_mul_i32 s{sWB}, s{sW}, 3072
    """)
    def dma_items(S):
        part, m = divmod(S, 3)
        sl = S % NSL; out = []
        for aa in range(2):
            so = (64 * m + 32 * aa) * 1152 + part * 384 if part < 3 else (64 * m + 32 * aa) * 384
            for p in range(3):
                grp = []
                if p == 0: grp.append(I(f's_mov_b32 s{sSo}, {so}'))
                grp.append(I(f's_add_u32 m0, s{sWB}, {sl*SLOT + aa*12288 + p*896}'))
                grp.append(I(f'buffer_load_dwordx4 v{vWq}, s[12:15], s{sSo} offen offset:{128*p} lds', [('W', S)]))
                out.append(grp)
        return out
    dq = [g for S in range(NST) for g in dma_items(S)]
    npre = 3
    for x in dbg:
        if x.startswith('pre'): npre = int(x[3:])
    for _ in range(npre):
        for it in dq.pop(0): emit(it)
    a(f's_mul_i32 s{sT1}, s{sW}, 12')
    for j in range(3):
        a(f"""
        v_add_u32 v{vT[0]}, s{sT1}, v{vG}
        v_add_u32 v{vT[0]}, {4*j}, v{vT[0]}            ; tk
        v_and_b32 v{vT[1]}, 7, v{vT[0]}                ; t
        v_lshrrev_b32 v{vT[2]}, 1, v{vI}
        v_xor_b32 v{vT[2]}, v{vT[2]}, v{vT[1]}
        v_lshlrev_b32 v{vT[2]}, 4, v{vT[2]}
        v_lshl_add_u32 v{vT[2]}, v{vT[1]}, 7, v{vT[2]}
        v_and_b32 v{vT[1]}, 1, v{vI}
        v_lshl_add_u32 v{vT[2]}, v{vT[1]}, 3, v{vT[2]}
        v_lshrrev_b32 v{vT[1]}, 3, v{vT[0]}            ; nl
        v_mul_u32_u24 v{vT[1]}, 3072, v{vT[1]}
        v_add_u32 v{vT[2]}, v{vT[2]}, v{vT[1]}
        v_add_u32 v{vXl[j]}, {XI}, v{vT[2]}
        v_lshrrev_b32 v{vT[2]}, 4, v{vT[0]}            ; tt
        v_mul_u32_u24 v{vT[2]}, 6, v{vT[2]}
        v_lshrrev_b32 v{vT[4]}, 3, v{vI}               ; spar
        v_add_u32 v{vT[2]}, v{vT[2]}, v{vT[4]}
        v_lshlrev_b32 v{vT[2]}, 10, v{vT[2]}
        v_mul_u32_u24 v{vT[4]}, 12, v{vT[4]}
        v_and_b32 v{vT[3]}, 15, v{vT[0]}               ; ii
        v_xor_b32 v{vT[3]}, v{vT[3]}, v{vT[4]}
        v_and_b32 v{vT[4]}, 3, v{vI}                   ; g'
        v_xor_b32 v{vT[3]}, v{vT[3]}, v{vT[4]}
        v_lshl_add_u32 v{vT[3]}, v{vT[4]}, 4, v{vT[3]}
        v_lshl_add_u32 v{vT[2]}, v{vT[3]}, 4, v{vT[2]}
        v_bfe_u32 v{vT[4]}, v{vI}, 2, 1
        v_lshl_add_u32 v{vT[2]}, v{vT[4]}, 3, v{vT[2]}
        v_add_u32 v{vHw[j]}, {HL}, v{vT[2]}
        """)
    a(f"""
    v_lshrrev_b32 v{vT[0]}, 1, v{vG}               ; g>>1
    v_mul_u32_u24 v{vT[0]}, 3072, v{vT[0]}
    v_and_b32 v{vT[1]}, 1, v{vG}
    v_lshlrev_b32 v{vT[1]}, 2, v{vT[1]}
    v_lshrrev_b32 v{vT[2]}, 2, v{vI}
    v_add_u32 v{vT[1]}, v{vT[1]}, v{vT[2]}         ; r
    v_lshl_add_u32 v{vT[0]}, v{vT[1]}, 7, v{vT[0]}
    v_bfe_u32 v{vT[1]}, v{vT[1]}, 1, 2
    v_lshlrev_b32 v{vT[1]}, 1, v{vT[1]}            ; swz
    v_bfe_u32 v{vT[2]}, v{vI}, 1, 1                ; c>>1
    v_xor_b32 v{vT[1]}, v{vT[1]}, v{vT[2]}         ; swz ^ (c>>1)
    v_and_b32 v{vT[2]}, 1, v{vI}
    v_lshl_add_u32 v{vT[0]}, v{vT[2]}, 3, v{vT[0]}
    """)
    for ct in range(3):
        a(f"""
        s_mul_i32 s{sT0}, s{sW}, 3
        s_add_u32 s{sT0}, s{sT0}, {ct}            ; m
        s_and_b32 s{sT1}, s{sT0}, 3
        s_lshl_b32 s{sT1}, s{sT1}, 1              ; u0
        s_lshr_b32 s{sT0}, s{sT0}, 2
        s_lshl_b32 s{sT0}, s{sT0}, 10             ; p*1024
        v_xor_b32 v{vT[2]}, s{sT1}, v{vT[1]}
        v_lshl_add_u32 v{vT[2]}, v{vT[2]}, 4, v{vT[0]}
        v_add_u32 v{vTr[0][ct]}, s{sT0}, v{vT[2]}
        v_add_u32 v{vTr[1][ct]}, {2*SLOT}, v{vTr[0][ct]}
        v_add_u32 v{vTr[2][ct]}, {4*SLOT}, v{vTr[0][ct]}
        """)
    a(f"""
    v_xor_b32 v{vT[0]}, v{vI}, v{vG}
    v_lshl_add_u32 v{vT[1]}, v{vG}, 4, v{vT[0]}
    v_lshlrev_b32 v{vHr[0]}, 4, v{vT[1]}
    v_add_u32 v{vHr[0]}, {HL}, v{vHr[0]}
    v_xor_b32 v{vHr[1]}, 192, v{vHr[0]}
    """)
    assert HL % 256 == 0
    for ct in range(3):
        a(f"""
        s_mul_i32 s{sT0}, s{sW}, 3
        s_add_u32 s{sT0}, s{sT0}, {ct}            ; a4
        s_lshr_b32 s{sT1}, s{sT0}, 1              ; s
        s_and_b32 s{sT0}, s{sT0}, 1               ; hi
        s_lshl_b32 s{sT0}, s{sT0}, 3
        s_and_b32 s{sT2}, s{sT1}, 1
        s_mul_i32 s{sT2}, s{sT2}, 192
        s_lshl_b32 s{sT1}, s{sT1}, 10
        s_add_u32 s{sT0}, s{sT0}, s{sT1}
        v_xor_b32 v{vOw[ct]}, s{sT2}, v{vHr[0]}
        v_add_u32 v{vOw[ct]}, s{sT0}, v{vOw[ct]}
        """)
    a(f"""
    s_mul_i32 s{sT0}, s{sW}, 3072
    s_add_u32 s{sT0}, s{sT0}, {SX}
    v_lshlrev_b32 v{vSw}, 4, v{vLane}
    v_add_u32 v{vSr}, {SX}, v{vSw}
    v_add_u32 v{vSw}, s{sT0}, v{vSw}
    s_mov_b32 s{sC}, {f2u(SCALE_L2E)}
    s_mov_b32 s{sInv}, {f2u(1.0/192)}
    v_lshrrev_b32 v{vT[0]}, 5, v{vLane}
    v_bfe_u32 v{vT[1]}, v{vLane}, 3, 1
    v_cmp_eq_u32 s[{sMask}:{sMask+1}], v{vT[0]}, v{vT[1]}
    v_lshrrev_b32 v{vT[0]}, 1, v{vG}
    v_mul_u32_u24 v{vT[0]}, 48, v{vT[0]}
    v_add_u32 v{vT[0]}, v{vT[0]}, v{vI}
    v_and_b32 v{vT[1]}, 1, v{vG}
    v_lshl_add_u32 v{vT[1]}, v{vT[1]}, 4, v{vT[0]}
    s_lshl_b32 s{sT0}, s{sW}, 2
    s_add_u32 s{sT0}, s{sT0}, {ST}
    v_lshlrev_b32 v{vT[1]}, 4, v{vT[1]}
    v_add_u32 v{vStW[0]}, s{sT0}, v{vT[1]}
    v_add_u32 v{vT[0]}, 32, v{vT[0]}
    v_lshlrev_b32 v{vT[0]}, 4, v{vT[0]}
    v_add_u32 v{vStW[1]}, s{sT0}, v{vT[0]}
    v_lshlrev_b32 v{vStR}, 4, v{vI}
    v_add_u32 v{vStR}, {ST}, v{vStR}
    """)
    for et in range(3):
        a(f"""
        s_mul_i32 s{sT0}, s{sW}, 6
        s_add_u32 s{sT0}, s{sT0}, {2*et}
        v_lshrrev_b32 v{vT[0]}, 1, v{vG}
        v_add_u32 v{vT[0]}, s{sT0}, v{vT[0]}        ; U
        v_and_b32 v{vT[1]}, 7, v{vT[0]}             ; u
        v_lshrrev_b32 v{vT[0]}, 3, v{vT[0]}         ; p
        v_and_b32 v{vT[2]}, 7, v{vI}                ; t
        v_xor_b32 v{vT[1]}, v{vT[1]}, v{vT[2]}
        v_lshlrev_b32 v{vT[1]}, 4, v{vT[1]}
        v_lshl_add_u32 v{vT[1]}, v{vT[2]}, 7, v{vT[1]}
        v_lshl_add_u32 v{vT[1]}, v{vT[0]}, 10, v{vT[1]}
        v_and_b32 v{vT[2]}, 1, v{vG}
        v_lshl_add_u32 v{vT[1]}, v{vT[2]}, 3, v{vT[1]}
        v_lshrrev_b32 v{vT[2]}, 3, v{vI}
        v_mul_u32_u24 v{vT[2]}, 3072, v{vT[2]}
        v_add_u32 v{vT[1]}, v{vT[1]}, v{vT[2]}
        v_add_u32 v{vGw[et]}, {XI}, v{vT[1]}
        """)
    a(f"""
    v_lshrrev_b32 v{vT[0]}, 3, v{vLane}       ; t
    v_and_b32 v{vT[1]}, 7, v{vLane}           ; slot
    """)
    for aa in range(2):
        if aa == 0: a(f's_mov_b32 s{sT0}, s{sW}')
        else: a(f's_and_b32 s{sT0}, s{sW}, 1\ns_add_u32 s{sT0}, s{sT0}, 4')
        a(f"""
        s_add_u32 s{sT1}, s{sT0}, s{sN0}          ; n
        s_lshr_b32 s{sT2}, s{sT1}, 1
        s_and_b32 s{sT2}, s{sT2}, 3
        s_lshl_b32 s{sT2}, s{sT2}, 1              ; swz(n&7)
        v_xor_b32 v{vT[2]}, s{sT2}, v{vT[1]}      ; u
        v_xor_b32 v{vT[2]}, v{vT[2]}, v{vT[0]}    ; u ^ t
        v_lshlrev_b32 v{vT[2]}, 4, v{vT[2]}
        v_lshl_add_u32 v{vT[2]}, v{vT[0]}, 7, v{vT[2]}
        s_mul_i32 s{sT0}, s{sT0}, 3072
        s_add_u32 s{sT0}, s{sT0}, {XI}
        v_add_u32 v{vRoL[aa]}, s{sT0}, v{vT[2]}
        s_lshr_b32 s{sT2}, s{sT1}, 5
        s_mul_i32 s{sT2}, s{sT2}, 12288
        s_and_b32 s{sT1}, s{sT1}, 31
        s_lshl_b32 s{sT1}, s{sT1}, 7
        s_add_u32 s{sT2}, s{sT2}, s{sT1}
        v_mul_u32_u24 v{vT[3]}, {TIMG}, v{vT[0]}
        v_lshl_add_u32 v{vT[3]}, v{vT[1]}, 4, v{vT[3]}
        v_add_u32 v{vRoG[aa]}, s{sT2}, v{vT[3]}
        """)
        if aa == 1:
            a(f"""
            s_cmp_ge_u32 s{sW}, 2
            s_cselect_b32 s{sT2}, 0x7f000000, 0
            v_or_b32 v{vRoG[aa]}, s{sT2}, v{vRoG[aa]}
            """)
    a(f's_movk_i32 s{sP1}, 4096\ns_movk_i32 s{sP2}, 8192')
    a(f"""
    s_lshl_b32 s{sT0}, s{sW}, 1
    s_add_u32 s{sT0}, s{sT0}, s{sN0}
    v_lshrrev_b32 v{vT[0]}, 3, v{vI}
    v_add_u32 v{vT[0]}, s{sT0}, v{vT[0]}      ; n
    v_and_b32 v{vT[1]}, 7, v{vI}
    v_mul_u32_u24 v{vT[1]}, 1296, v{vT[1]}
    v_add_u32 v{vT[0]}, v{vT[0]}, v{vT[1]}
    v_lshlrev_b32 v{vT[0]}, 3, v{vT[0]}
    v_add_u32 v{vT[0]}, {STATOFF}, v{vT[0]}
    s_cmp_eq_u32 s{sW}, 3
    s_cselect_b32 s{sT1}, 0, 1
    v_cmp_gt_u32 vcc, s{sT1}, v{vG}
    v_mov_b32 v{vT[1]}, 0x7fffffff
    s_cmp_eq_u32 s{sW}, 3
    s_cselect_b32 s{sT0}, 0, s{sW}
    v_cndmask_b32 v{vStG}, v{vT[1]}, v{vT[0]}, vcc
    s_lshl_b32 s{sT1}, s{sT0}, 10
    v_add_u32 v{vSr}, s{sT1}, v{vSr}
    s_lshl_b32 s{sT1}, s{sT0}, 9
    s_add_u32 s{sT1}, s{sT1}, {PX}
    v_lshlrev_b32 v{vT[0]}, 3, v{vLane}
    v_add_u32 v{vPA[0]}, s{sT1}, v{vT[0]}
    v_add_u32 v{vPA[1]}, {PX}, v{vT[0]}
    """)
    npost = 0
    for x in dbg:
        if x.startswith('post'): npost = int(x[4:])
    for _ in range(npost):
        for it in dq.pop(0): emit(it)
    stp.stamp('addr')
    a('s_barrier', muses=['x'])
    stp.stamp('xarr')
    ln = []
    vSum = [accA + 2 * j for j in range(3)]; vSq = [accA + 6 + 2 * j for j in range(3)]
    vF = accA + 12
    for j in range(3):
        for m in range(3):
            ln.append(I(f'ds_read_b64 {vr(vX+6*j+2*m,2)}, v{vXl[j]} offset:{1024*m}'))
    ln.append(I(f's_mov_b32 s{sT0}, 0x3f803f80'))
    for j in range(3):
        ln.append(I(f'v_mov_b32 v{vSum[j]}, 0')); ln.append(I(f'v_mov_b32 v{vSq[j]}, 0'))
    for k in range(6):
        for j in range(3):
            ln.append(I(f'v_dot2c_f32_bf16 v{vSum[j]}, s{sT0}, v{vX+6*j+k}'))
            ln.append(I(f'v_dot2c_f32_bf16 v{vSq[j]}, v{vX+6*j+k}, v{vX+6*j+k}'))
    for rot in (8, 4, 2, 1):
        for j in range(3):
            ln.append(I(f'v_add_f32_dpp v{vSum[j]}, v{vSum[j]}, v{vSum[j]} row_ror:{rot} row_mask:0xf bank_mask:0xf'))
            ln.append(I(f'v_add_f32_dpp v{vSq[j]}, v{vSq[j]}, v{vSq[j]} row_ror:{rot} row_mask:0xf bank_mask:0xf'))
    def ln_stats(S_, Q_, T_):
        out = []
        for s_, t_ in zip(S_, T_): out.append(I(f'v_mul_f32 v{s_}, s{sInv}, v{s_}'))
        for s_, t_ in zip(S_, T_): out.append(I(f'v_mul_f32 v{t_}, v{s_}, v{s_}'))
        for q_, t_ in zip(Q_, T_): out.append(I(f'v_fma_f32 v{q_}, v{q_}, s{sInv}, -v{t_}'))
        for q_ in Q_: out.append(I(f'v_max_f32 v{q_}, 0, v{q_}'))
        for q_ in Q_: out.append(I(f'v_add_f32 v{q_}, {f2u(1e-5)}, v{q_}'))
        for q_ in Q_: out.append(I(f'v_rsq_f32 v{q_}, v{q_}'))
        for s_, q_ in zip(S_, Q_): out.append(I(f'v_mul_f32_e64 v{s_}, -v{s_}, v{q_}'))
        return out
    ln += ln_stats(vSum, vSq, vT[0:3])
    for j in range(3):
        for k in range(6):
            ln.append(I(f'v_lshlrev_b32 v{vF+2*k}, 16, v{vX+6*j+k}'))
            ln.append(I(f'v_and_b32 v{vF+2*k+1}, 0xffff0000, v{vX+6*j+k}'))
        for k in range(6):
            ln.append(I(f'v_pk_fma_f32 {vr(vF+2*k,2)}, {vr(vF+2*k,2)}, {vr(vSq[j],2)}, {vr(vSum[j],2)} op_sel_hi:[1,0,0]'))
        for k in range(6):
            ln.append(I(f'v_cvt_pk_bf16_f32 v{vX+6*j+k}, v{vF+2*k}, v{vF+2*k+1}'))
        for m in range(3):
            ln.append(I(f'ds_write_b64 v{vHw[j]}, {vr(vX+6*j+2*m,2)} offset:{2048*m}', ['himg']))
    nln = 9
    for x in dbg:
        if x.startswith('ln'): nln = int(x[2:])
    d1 = [dq.pop(0) for _ in range(nln)]
    step = (len(ln) - 10) // (len(d1) + 1)
    for n_, it in enumerate(ln):
        emit(it)
        if n_ >= 10 and (n_ - 10) % step == step - 1 and d1:
            for x in d1.pop(0): emit(x)
    while d1:
        for x in d1.pop(0): emit(x)
    stp.stamp('ln1')
    a('s_barrier', muses=['himg', ('W', 0)])
    stp.stamp('bar0')
    def hread(s, tt): return I(f'ds_read_b128 {ar(aH+(tt*6+s)*4,4)}, v{vHr[s&1]} offset:{(tt*6+s)*1024}')
    for tt in range(3): emit(hread(0, tt))
    hrest = [hread(s, tt) for s in range(1, 6) for tt in range(3)]
    DIST = 3
    for x in dbg:
        if x.startswith('dist'): DIST = int(x[4:])
    fcount = [0]
    def trreads(S, ksl, ct):
        b = aW + 4 * (fcount[0] % 5); fcount[0] += 1
        sl = S % NSL
        return b, [I(f'ds_read_b64_tr_b16 {ar(b+2*hf,2)}, v{vTr[sl>>1][ct]} offset:{(sl&1)*SLOT+ksl*12288+hf*6144}', [('rd', S)]) for hf in range(2)]
    def acc(base, ct, tt): return base + (ct * 3 + tt) * 4
    frs = [(S, ksl, ct) for S in range(NST) for ksl in range(2) for ct in range(3)]
    fbuf = {}; nread = [0]; passed = [0]
    extra_bar = {}
    def barrier_for(S):
        uses, after = extra_bar.get(S, ((), ()))
        if 'nobar' in dbg and S not in (8, 9): pass
        else: a('s_barrier', muses=[('W', S), ('rd', S - 2)] + list(uses))
        passed[0] = S
        for it in after: emit(it)
    def next_reads(upto, hold):
        if nread[0] > min(upto, len(frs) - 1): return []
        S, ksl, ct = frs[nread[0]]
        if S >= hold: return []
        if S > passed[0]: barrier_for(S)
        b, rd = trreads(S, ksl, ct)
        fbuf[(S, ksl, ct)] = b; nread[0] += 1
        return rd
    def read_ahead(upto, hold):
        while True:
            rd = next_reads(upto, hold)
            if not rd: break
            for it in rd: emit(it)
    def stage(S, fill=(), cinit=False, hold=99):
        part, m = divmod(S, 3)
        base = [accA, accB, accA, accC][part]
        fill = list(fill); nfill = len(fill); done = 0
        gap = 0
        for n in range(6):
            ksl, ct = divmod(n, 3); ks = 2 * m + ksl
            read_ahead(S * 6 + n + 2, hold)
            rd = next_reads(S * 6 + n + 3, hold)
            dms = []
            for q in range(2):
                if dq:
                    nxt = (6 * NST - len(dq)) // 6
                    if nxt - 3 <= passed[0] and (q == 0 or nxt < S + DIST): dms.append(dq.pop(0))
            if 'nodma' in dbg: dms = [[x for x in g if 'buffer' not in x[0]] for g in dms]
            b = fbuf[(S, ksl, ct)]
            def mf(tt):
                d = vr(acc(base, ct, tt), 4)
                c_ = '0' if (ks == 0 and not cinit) else d
                hf_ = ar(aH + (tt * 6 + ks) * 4, 4)
                if part == 2: a(f'v_mfma_f32_16x16x32_bf16 {d}, {hf_}, {ar(b,4)}, {c_}')
                else: a(f'v_mfma_f32_16x16x32_bf16 {d}, {ar(b,4)}, {hf_}, {c_}')
            def fills(k):
                nonlocal done
                while k > 0 and done < nfill:
                    it = fill[done]; done += 1
                    if it is not None: emit(it); k -= 1
            want = (nfill * (n + 1) + 5) // 6
            if rd: emit(rd[0])
            mf(0)
            if rd: emit(rd[1])
            if dms:
                for x in dms[0][:-1]: emit(x)
            else: fills(1)
            mf(1)
            if dms: emit(dms[0][-1])
            else: fills(min(2, want - done))
            if len(dms) > 1:
                for x in dms[1][:-1]: emit(x)
            mf(2)
            if len(dms) > 1: emit(dms[1][-1])
            while done < min(want, nfill):
                it = fill[done]; done += 1
                emit(it)
        while done < nfill:
            emit(fill[done]); done += 1
    def cvts(base, dst_of):
        out = []
        for tt in range(3):
            for ct in range(3):
                s_ = acc(base, ct, tt); d_ = dst_of(tt, ct)
                out.append(I(f'v_cvt_pk_bf16_f32 v{d_}, v{s_}, v{s_+1}'))
                out.append(I(f'v_cvt_pk_bf16_f32 v{d_+1}, v{s_+2}, v{s_+3}'))
        return out
    read_ahead(2, 99)
    for it in hrest[:3]: emit(it)
    stage(0, fill=hrest[3:] + [None] * 6)
    stage(1)
    stage(2)
    stp.stamp('q')
    xr = [I(f'ds_read_b64 {vr(vV+(tt*3+et)*2,2)}, v{vGw[et]} offset:{tt*6144}', ['xrd']) for tt in range(3) for et in range(3)]
    xu = []
    for tt in range(3):
        for et in range(3):
            b = acc(accC, et, tt); x_ = vV + (tt * 3 + et) * 2
            xu += [I(f'v_lshlrev_b32 v{b}, 16, v{x_}'), I(f'v_and_b32 v{b+1}, 0xffff0000, v{x_}'),
                   I(f'v_lshlrev_b32 v{b+2}, 16, v{x_+1}'), I(f'v_and_b32 v{b+3}, 0xffff0000, v{x_+1}')]
    stage(3, fill=xr + [None, None] + cvts(accA, lambda tt, ct: vQ + tt * 6 + ct * 2))
    aV = 96
    wv = []
    for s_ in range(6):
        for et in range(3):
            c = et * 6 + s_; so = 40 if c < 12 else 41; cc = c % 12
            wv.append(I(f'buffer_load_dwordx4 {ar(aV+c*4,4)}, v{vD2[cc>>2]}, s[20:23], s{so} offen offset:{(cc&3)*1024} sc1'))
    def mix(l1, l2):
        out = []; n = max(len(l1), 1)
        j = 0
        for i_, x in enumerate(l1):
            out.append(x)
            while j < len(l2) * (i_ + 1) // n: out.append(l2[j]); j += 1
        return out + l2[j:]
    stage(4, fill=xu[:18])
    a(f'buffer_load_dword v{vCw}, off, s[52:55], 0 offset:128 sc1')
    stage(5, fill=xu[18:])
    stp.stamp('k')
    f6 = cvts(accB, lambda tt, ct: vK + tt * 6 + ct * 2)
    for tt in range(3):
        for it in f6[6*tt:6*tt+6]: emit(it)
    for tt in range(3):
        a(f'v_mfma_f32_16x16x32_bf16 {vr(vS+4*tt,4)}, {vr(vK+6*tt,4)}, {vr(vQ+6*tt,4)}, 0')
    a(f"""
    v_readfirstlane_b32 s{sT0}, v{vCw}
    s_mul_i32 s{sT1}, s{sW}, 18432
    s_add_u32 s40, s{sT1}, {WVTOFF}
    s_add_u32 s41, s40, 12288
    v_lshlrev_b32 v{vD2[0]}, 4, v{vLane}
    """)
    for tt in range(3):
        a(f'v_mfma_f32_16x16x16_bf16 {vr(vS+4*tt,4)}, {vr(vK+6*tt+4,2)}, {vr(vQ+6*tt+4,2)}, {vr(vS+4*tt,4)}')
    a(f"""
    v_add_u32 v{vD2[1]}, 4096, v{vD2[0]}
    v_add_u32 v{vD2[2]}, 8192, v{vD2[0]}
    """)
    for tt in range(3):
        a(f'ds_write_b128 v{vSw}, {vr(vS+4*tt,4)} offset:{tt*1024}', mdefs=['sx'])
    a(f"""
    s_cmp_eq_u32 s{sW}, 0
    s_cselect_b32 s{sT0}, s{sT0}, 1
    s_cmp_eq_u32 s{sT0}, 0
    s_cbranch_scc1 LA_wspin
    LA_wok:
    """)
    a('s_barrier', muses=['sx'])
    stp.stamp('wok')
    if 'nowarm' not in dbg:
        a(f"""
        s_lshr_b32 s{sT0}, s{sM}, 3
        s_mul_i32 s{sT0}, s{sT0}, 22
        v_add_u32 v{vT[0]}, s{sT0}, v{vLane}
        v_cmp_gt_u32 vcc, 22, v{vLane}
        v_lshlrev_b32 v{vT[0]}, 7, v{vT[0]}
        v_mov_b32 v{vT[1]}, 0x7ffffff0
        s_mov_b32 s{sT0}, {WVTOFF}
        v_cndmask_b32 v{vT[0]}, v{vT[1]}, v{vT[0]}, vcc
        """)
        a(f'buffer_load_dword v{vJunk[1]}, v{vT[0]}, s[20:23], s{sT0} offen sc1')
    for w2 in range(4):
        a(f'ds_read_b128 {vr(vSx+w2*4,4)}, v{vSr} offset:{w2*3072}', mdefs=['sxrd'])
    f5 = []
    b = vSx
    f5.append(I(f'v_pk_add_f32 {vr(b,2)}, {vr(b,2)}, {vr(b+4,2)}'))
    f5.append(I(f'v_pk_add_f32 {vr(b+2,2)}, {vr(b+2,2)}, {vr(b+6,2)}'))
    f5.append(I(f'v_pk_add_f32 {vr(b+8,2)}, {vr(b+8,2)}, {vr(b+12,2)}'))
    f5.append(I(f'v_pk_add_f32 {vr(b+10,2)}, {vr(b+10,2)}, {vr(b+14,2)}'))
    f5.append(I(f'v_pk_add_f32 {vr(b,2)}, {vr(b,2)}, {vr(b+8,2)}'))
    f5.append(I(f'v_pk_add_f32 {vr(b+2,2)}, {vr(b+2,2)}, {vr(b+10,2)}'))
    m_, m2_ = b + 4, b + 5
    f5.append(I(f'v_max3_f32 v{m_}, v{b}, v{b+1}, v{b+2}'))
    f5.append(I(f'v_max_f32 v{m_}, v{m_}, v{b+3}'))
    f5.append(I(f'v_mov_b32 v{m2_}, v{m_}'))
    f5.append(None)
    f5.append(I(f'v_permlane16_swap_b32 v{m_}, v{m2_}'))
    f5.append(I(f'v_max_f32 v{m_}, v{m_}, v{m2_}'))
    f5.append(I(f'v_mul_f32 v{m_}, s{sC}, v{m_}'))
    for r in range(4): f5.append(I(f'v_fma_f32 v{b+r}, v{b+r}, s{sC}, -v{m_}'))
    for r in range(4): f5.append(I(f'v_exp_f32 v{b+r}, v{b+r}'))
    f5.append(I(f'v_add_f32 v{m_}, v{b}, v{b+1}')); f5.append(I(f'v_add_f32 v{m2_}, v{b+2}, v{b+3}'))
    f5.append(I(f'v_add_f32 v{m_}, v{m_}, v{m2_}'))
    f5.append(I(f'v_mov_b32 v{m2_}, v{m_}'))
    f5.append(None)
    f5.append(I(f'v_permlane16_swap_b32 v{m_}, v{m2_}'))
    f5.append(I(f'v_add_f32 v{m_}, v{m_}, v{m2_}'))
    f5.append(I(f'v_rcp_f32 v{m_}, v{m_}'))
    f5.append(None)
    f5.append(I(f'v_cndmask_b32 v{m_}, 0, v{m_}, s[{sMask}:{sMask+1}]'))
    f5.append(I(f'v_pk_mul_f32 {vr(b,2)}, {vr(b,2)}, {vr(m_,2)} op_sel_hi:[1,0]'))
    f5.append(I(f'v_pk_mul_f32 {vr(b+2,2)}, {vr(b+2,2)}, {vr(m_,2)} op_sel_hi:[1,0]'))
    f5.append(I(f'v_cvt_pk_bf16_f32 v{b+6}, v{b}, v{b+1}'))
    f5.append(I(f'v_cvt_pk_bf16_f32 v{b+7}, v{b+2}, v{b+3}'))
    f5.append(I(f'ds_write_b64 v{vPA[0]}, {vr(b+6,2)}', ['px']))
    wq_ = list(wv)
    for _ in range(3): emit(wq_.pop(0))
    for n_, it in enumerate(f5):
        emit(it)
        if n_ % 4 == 3 and len(wq_) > 6: emit(wq_.pop(0))
    while len(wq_) > 6: emit(wq_.pop(0))
    a('s_barrier', muses=['px', 'sxrd'])
    stp.stamp('P')
    for tt in range(3):
        a(f'ds_read_b64 {vr(vP+2*tt,2)}, v{vPA[1]} offset:{tt*512}')
    for g in range(18):
        s_, et = divmod(g, 3)
        for tt in range(3):
            d = vr(acc(accA, et, tt), 4)
            a(f'v_mfma_f32_16x16x32_bf16 {d}, {ar(aH+(tt*6+s_)*4,4)}, {ar(aV+(et*6+s_)*4,4)}, {"0" if s_ == 0 else d}')
            if tt == 0 and wq_: emit(wq_.pop(0))
    stp.stamp('v')
    cv = cvts(accA, lambda tt, ct: vV + (tt * 3 + ct) * 2)
    for tt in range(3):
        for it in cv[6*tt:6*tt+6]: emit(it)
        for et in range(3):
            d = vr(acc(accC, et, tt), 4)
            a(f'v_mfma_f32_16x16x16_bf16 {d}, {vr(vV+(tt*3+et)*2,2)}, {vr(vP+2*tt,2)}, {d}')
    assert not dq
    stp.stamp('oproj')
    sm = [vS + 0, vS + 2, vS + 4]; sq = [vS + 6, vS + 8, vS + 10]
    for tt in range(3):
        regs = [acc(accC, et, tt) + 2 * h for et in range(3) for h in range(2)]
        a(f'v_pk_add_f32 {vr(sm[tt],2)}, {vr(regs[0],2)}, {vr(regs[1],2)}')
        a(f'v_pk_mul_f32 {vr(sq[tt],2)}, {vr(regs[0],2)}, {vr(regs[0],2)}')
    for k in range(1, 6):
        for tt in range(3):
            regs = [acc(accC, et, tt) + 2 * h for et in range(3) for h in range(2)]
            if k >= 2: a(f'v_pk_add_f32 {vr(sm[tt],2)}, {vr(sm[tt],2)}, {vr(regs[k],2)}')
            a(f'v_pk_fma_f32 {vr(sq[tt],2)}, {vr(regs[k],2)}, {vr(regs[k],2)}, {vr(sq[tt],2)}')
    for tt in range(3):
        a(f'v_add_f32 v{sm[tt]}, v{sm[tt]}, v{sm[tt]+1}')
        a(f'v_add_f32 v{sq[tt]}, v{sq[tt]}, v{sq[tt]+1}')
    for tt in range(3): a(f'v_permlane32_swap_b32 v{sm[tt]}, v{sq[tt]}')
    for tt in range(3): a(f'v_add_f32 v{sm[tt]}, v{sm[tt]}, v{sq[tt]}')
    cp = vS + 1
    a(f'v_mov_b32 v{cp}, v{sm[2]}')
    a(f'v_permlane16_swap_b32 v{sm[0]}, v{sm[1]}')
    a(f'v_permlane16_swap_b32 v{sm[2]}, v{cp}')
    a(f'v_add_f32 v{sm[0]}, v{sm[0]}, v{sm[1]}')
    a(f'v_add_f32 v{sm[2]}, v{sm[2]}, v{cp}')
    a(f'ds_write_b32 v{vStW[0]}, v{sm[0]}', mdefs=['st'])
    a(f'ds_write_b32 v{vStW[1]}, v{sm[2]}', mdefs=['st'])
    a('s_barrier', muses=['st'])
    stp.stamp('stbar')
    vR = accA
    for stat in range(2):
        for tt in range(3):
            a(f'ds_read_b128 {vr(vR+(stat*3+tt)*4,4)}, v{vStR} offset:{(stat*48+16*tt)*16}')
    mu = [vS + 0, vS + 2, vS + 4]; rs = [vS + 6, vS + 8, vS + 10]
    for stat, dst in ((0, mu), (1, rs)):
        for tt in range(3):
            b = vR + (stat * 3 + tt) * 4
            a(f'v_pk_add_f32 {vr(b,2)}, {vr(b,2)}, {vr(b+2,2)}')
        for tt in range(3):
            b = vR + (stat * 3 + tt) * 4
            a(f'v_add_f32 v{dst[tt]}, v{b}, v{b+1}')
    vMS = vQ
    st_out = ln_stats(mu, rs, vT[0:3])
    for n_, it in enumerate(st_out):
        emit(it)
        if n_ == 2:
            for tt in range(3): a(f'v_mov_b32 v{vMS+2*tt}, v{mu[tt]}')
        if n_ == 14:
            for tt in range(3): a(f'v_mov_b32 v{vMS+2*tt+1}, v{rs[tt]}')
        if n_ == 17:
            for tt in range(3): a(f'v_mul_f32 v{vMS+2*tt+1}, v{vMS+2*tt+1}, v{rs[tt]}')
    a(f"""
    s_cmp_eq_u32 s{sW}, 1
    s_cselect_b64 vcc, -1, 0
    v_cndmask_b32 v{vMS}, v{vMS}, v{vMS+2}, vcc
    v_cndmask_b32 v{vMS+1}, v{vMS+1}, v{vMS+3}, vcc
    s_cmp_eq_u32 s{sW}, 2
    s_cselect_b64 vcc, -1, 0
    v_cndmask_b32 v{vMS}, v{vMS}, v{vMS+4}, vcc
    v_cndmask_b32 v{vMS+1}, v{vMS+1}, v{vMS+5}, vcc
    """)
    a(f'buffer_store_dwordx2 {vr(vMS,2)}, v{vStG}, s[20:23], 0 offen sc1')
    vPk2 = vV
    for tt in range(3):
        for et in range(3):
            b = acc(accC, et, tt); d_ = vPk2 + (tt * 3 + et) * 2
            a(f'v_pk_fma_f32 {vr(b,2)}, {vr(b,2)}, {vr(rs[tt],2)}, {vr(mu[tt],2)} op_sel_hi:[1,0,0]')
            a(f'v_pk_fma_f32 {vr(b+2,2)}, {vr(b+2,2)}, {vr(rs[tt],2)}, {vr(mu[tt],2)} op_sel_hi:[1,0,0]')
        for et in range(3):
            b = acc(accC, et, tt); d_ = vPk2 + (tt * 3 + et) * 2
            a(f'v_cvt_pk_bf16_f32 v{d_}, v{b}, v{b+1}')
            a(f'v_cvt_pk_bf16_f32 v{d_+1}, v{b+2}, v{b+3}')
            a(f'ds_write_b64 v{vGw[et]}, {vr(d_,2)} offset:{tt*6144}', mdefs=['stg'])
    a('s_barrier', muses=['stg'])
    stp.stamp('stg')
    vOut = accA
    for aa in range(2):
        for p in range(3):
            a(f'ds_read_b128 {vr(vOut+(aa*3+p)*4,4)}, v{vRoL[aa]} offset:{1024*p}')
    for aa in range(2):
        for p in range(3):
            so = ['0', f's{sP1}', f's{sP2}'][p]
            hfl = ' sc1'
            for x_ in dbg:
                if x_.startswith('hs_'): hfl = (' ' + x_[3:].replace('_', ' ')).rstrip().replace(' plain', '')
            a(f'buffer_store_dwordx4 {vr(vOut+(aa*3+p)*4,4)}, v{vRoG[aa]}, s[20:23], {so} offen{hfl}')
    stp.stamp('stores')
    if fused: return a, stp
    if stamps:
        a('s_waitcnt vmcnt(0)')
        stp.stamp('drained')
    if 'clk' in dbg:
        a('s_waitcnt vmcnt(0)')
        dbg_clock_end(a, sW)
    stp.dump(sW, 's[20:23]', 4)
    build_main.names = stp.names
    a('s_endpgm')
    return finalize(a)

def wspin():
    return """LA_wspin:
  s_mov_b32 s94, 0
LA_wspin1:
  s_sleep 4
  buffer_load_dword v206, off, s[52:55], 0 offset:128 sc1
  s_add_u32 s94, s94, 1
  s_waitcnt vmcnt(0)
  v_readfirstlane_b32 s26, v206
  s_cmp_ge_u32 s94, 0x40000
  s_cbranch_scc1 LA_wok
  s_nop 4
  s_cmp_eq_u32 s26, 0
  s_cbranch_scc1 LA_wspin1
  s_branch LA_wok
"""

def build_spare(stamps=False):
    sW, sT0, sT1, sT2, sEt, sS, sSb, sOut, sK = 24, 26, 27, 28, 29, 30, 31, 32, 33
    vLane, vG, vI = 1, 2, 3
    vT = [4, 5, 6, 7]
    vA0, vA1, vB, vTr, vSt = 9, 10, 11, 12, 13
    def fin(a):
        if stamps:
            a(f"""
            s_memrealtime s[58:59]
            s_waitcnt lgkmcnt(0)
            s_lshl_b32 s93, s2, 2
            s_add_u32 s93, s93, s{sW}
            s_lshl_b32 s93, s93, 7
            s_add_u32 s93, s93, {STAMPOFF}
            v_mov_b32 v4, s56
            v_mov_b32 v5, s58
            v_mov_b32 v6, 0
            s_nop 4
            buffer_store_dwordx2 v[4:5], v6, s[20:23], s93 offen
            """)
        a('s_endpgm')
    def common(a):
        if stamps: a('s_memrealtime s[56:57]')
        a(f"""
        v_lshrrev_b32 v{vT[0]}, 6, v0
        v_and_b32 v{vLane}, 63, v0
        v_readfirstlane_b32 s{sW}, v{vT[0]}
        v_lshrrev_b32 v{vG}, 4, v{vLane}
        v_and_b32 v{vI}, 15, v{vLane}
        v_lshlrev_b32 v{vSt}, 4, v{vLane}
        s_mov_b32 s14, {192*576*2}
        s_mov_b32 s15, 0x00020000
        s_mov_b32 s18, {192*192*2}
        s_mov_b32 s19, 0x00020000
        s_mov_b32 s22, {WSUSE}
        s_mov_b32 s23, 0x00020000
        """)
    out = ''
    a = Asm()
    a('LS_vt:')
    a(f"""
    s_load_dwordx2 s[12:13], s[0:1], 8
    s_load_dwordx2 s[16:17], s[0:1], 16
    s_load_dwordx2 s[20:21], s[0:1], 56
    s_load_dwordx2 s[52:53], s[0:1], 48
    s_mov_b32 s54, 256
    s_mov_b32 s55, 0x00020000
    """)
    common(a)
    AI = 24576
    a(f"""
    s_mul_hi_u32 s{sS}, s2, {(2**32 + 2)//3}            ; s = wg / 3
    s_mul_i32 s{sT0}, s{sS}, 3
    s_sub_u32 s{sEt}, s2, s{sT0}                        ; span = wg % 3
    v_lshrrev_b32 v{vT[0]}, 3, v{vLane}                 ; r
    v_and_b32 v{vT[1]}, 7, v{vLane}                     ; slot
    v_mul_u32_u24 v{vB}, 384, v{vT[0]}
    v_lshl_add_u32 v{vB}, v{vT[1]}, 4, v{vB}
    v_bfe_u32 v{vT[2]}, v{vLane}, 4, 2
    v_lshlrev_b32 v{vT[2]}, 1, v{vT[2]}
    v_xor_b32 v{vT[2]}, v{vT[2]}, v{vT[1]}
    v_mul_u32_u24 v{vA0}, 1152, v{vT[0]}
    v_lshl_add_u32 v{vA0}, v{vT[2]}, 4, v{vA0}          ; Wv: r*1152 + u*16
    s_lshl_b32 s{sT0}, s{sS}, 5
    s_lshl_b32 s{sT1}, s{sW}, 3
    s_add_u32 s{sT0}, s{sT0}, s{sT1}
    s_mul_i32 s{sT0}, s{sT0}, 1152
    s_add_u32 s{sT0}, s{sT0}, 768
    s_mul_i32 s{sT1}, s{sW}, 3072
    """)
    for p in range(3):
        a(f's_add_u32 m0, s{sT1}, {AI + p*896}')
        a(f'buffer_load_dwordx4 v{vA0}, s[12:15], s{sT0} offen offset:{128*p} lds', mdefs=['w'])
    a(f"""
    s_mul_i32 s{sT0}, s{sW}, {8*384}
    s_lshl_b32 s{sT1}, s{sEt}, 7
    s_add_u32 s{sT0}, s{sT0}, s{sT1}
    s_lshl_b32 s{sT1}, s{sW}, 10
    """)
    for k in range(6):
        a(f's_add_u32 m0, s{sT1}, {4096*k}')
        if k: a(f's_add_u32 s{sT0}, s{sT0}, {32*384}')
        a(f'buffer_load_dwordx4 v{vB}, s[16:19], s{sT0} offen lds', mdefs=['w'])
    a(f"""
    v_lshrrev_b32 v{vT[0]}, 2, v{vI}
    v_lshl_add_u32 v{vT[0]}, v{vG}, 3, v{vT[0]}         ; row 8g + (i>>2)
    v_lshlrev_b32 v{vT[0]}, 7, v{vT[0]}
    v_and_b32 v{vT[1]}, 3, v{vI}
    v_lshl_add_u32 v{vT[0]}, v{vT[1]}, 3, v{vT[0]}
    s_lshl_b32 s{sT0}, s{sW}, 5
    v_add_u32 v{vTr}, s{sT0}, v{vT[0]}
    v_lshrrev_b32 v{vT[0]}, 3, v{vI}
    v_mul_u32_u24 v{vT[0]}, 3072, v{vT[0]}
    v_and_b32 v{vT[1]}, 7, v{vI}
    v_lshl_add_u32 v{vT[0]}, v{vT[1]}, 7, v{vT[0]}
    v_bfe_u32 v{vT[1]}, v{vI}, 1, 2
    v_lshlrev_b32 v{vT[1]}, 1, v{vT[1]}
    v_xor_b32 v{vT[1]}, v{vT[1]}, v{vG}
    v_lshl_add_u32 v{vA0}, v{vT[1]}, 4, v{vT[0]}
    v_add_u32 v{vA0}, {AI}, v{vA0}
    v_xor_b32 v{vA1}, 64, v{vA0}
    s_lshl_b32 s{sT0}, s{sEt}, 2
    s_add_u32 s{sT0}, s{sT0}, s{sW}                     ; e-tile
    s_mul_i32 s{sT0}, s{sT0}, 6
    s_add_u32 s{sT0}, s{sT0}, s{sS}
    s_lshl_b32 s{sOut}, s{sT0}, 10
    s_add_u32 s{sOut}, s{sOut}, {WVTOFF}
    """)
    a('s_barrier', muses=['w'])
    vAf, vBf, vD = 16, 64, 90
    for cs in range(6):
        for hi in range(2):
            a(f'ds_read_b128 {vr(vAf+8*cs+4*hi,4)}, v{[vA0, vA1][cs&1]} offset:{hi*6144+(cs>>1)*1024}')
        for hf in range(2):
            a(f'ds_read_b64_tr_b16 {vr(vBf+4*cs+2*hf,2)}, v{vTr} offset:{cs*4096+hf*512}')
    for cs in range(6):
        for b in range(2):
            d = vr(vD + 4 * b, 4)
            a(f'v_mfma_f32_16x16x32_bf16 {d}, {vr(vAf+8*cs+4*b,4)}, {vr(vBf+4*cs,4)}, {"0" if cs == 0 else d}')
    for r in range(4): a(f'v_cvt_pk_bf16_f32 v{vD+r}, v{vD+2*r}, v{vD+2*r+1}')
    a(f'buffer_store_dwordx4 {vr(vD,4)}, v{vSt}, s[20:23], s{sOut} offen sc1')
    a("""
    s_waitcnt vmcnt(0)
    s_barrier
    s_cmp_lg_u32 s24, 0
    s_cbranch_scc1 LA_end
    v_mov_b32 v4, 1
    v_mov_b32 v5, 0
    s_mov_b64 exec, 1
    buffer_atomic_add v4, v5, s[52:55], 0 offen sc0
    s_waitcnt vmcnt(0)
    v_readfirstlane_b32 s26, v4
    v_mov_b32 v4, 1
    s_nop 3
    s_cmp_lg_u32 s26, 17
    s_cbranch_scc1 LS_vt_done
    buffer_store_dword v4, off, s[52:55], 0 offset:128 sc1
    LS_vt_done:
    s_mov_b64 exec, -1
    """)
    if stamps: a('s_waitcnt vmcnt(0)')
    fin(a)
    out += finalize(a)
    a = Asm()
    a('LS_qk:')
    a(f"""
    s_load_dwordx2 s[12:13], s[0:1], 24
    s_load_dwordx2 s[20:21], s[0:1], 56
    """)
    common(a)
    a(f"""
    s_sub_u32 s{sEt}, s2, 18                       ; ct
    v_lshrrev_b32 v{vT[0]}, 2, v{vI}
    v_lshlrev_b32 v{vT[0]}, 3, v{vT[0]}
    v_and_b32 v{vT[1]}, 3, v{vI}
    v_add_u32 v{vT[0]}, v{vT[0]}, v{vT[1]}         ; 8(i>>2)+(i&3)
    s_lshr_b32 s{sT0}, s{sEt}, 1
    s_lshl_b32 s{sT0}, s{sT0}, 5
    s_and_b32 s{sT1}, s{sEt}, 1
    s_lshl_b32 s{sT1}, s{sT1}, 2
    s_add_u32 s{sT0}, s{sT0}, s{sT1}
    v_add_u32 v{vT[1]}, s{sT0}, v{vT[0]}
    v_mul_u32_u24 v{vB}, 1152, v{vT[1]}
    v_lshl_add_u32 v{vB}, v{vG}, 4, v{vB}
    s_mul_i32 s{sOut}, s{sEt}, 6144
    s_add_u32 s{sOut}, s{sOut}, {WQKOFF}
    s_mov_b32 s{sK}, {f2u(SCALE_L2E)}
    """)
    vAf = [16, 64]; vBf = 112; vD = [140, 148]
    for es in range(6):
        a(f'buffer_load_dwordx4 {vr(vBf+4*es,4)}, v{vB}, s[12:15], 0 offen offset:{384+64*es}')
    def srnd(a, rnd):
        if rnd == 0: a(f's_mov_b32 s{sS}, s{sW}')
        else: a(f's_and_b32 s{sS}, s{sW}, 1\ns_add_u32 s{sS}, s{sS}, 4')
    def store_off(a, rnd):
        if rnd == 0: a(f's_lshl_b32 s{sT0}, s{sW}, 10')
        else:
            a(f"""
            s_and_b32 s{sT0}, s{sW}, 1
            s_add_u32 s{sT0}, s{sT0}, 4
            s_lshl_b32 s{sT0}, s{sT0}, 10
            s_cmp_ge_u32 s{sW}, 2
            s_cselect_b32 s{sT1}, 0x7f000000, 0
            s_add_u32 s{sT0}, s{sT0}, s{sT1}
            """)
    for rnd in range(2):
        srnd(a, rnd)
        a(f"""
        s_lshl_b32 s{sT0}, s{sS}, 5
        v_add_u32 v{vT[1]}, s{sT0}, v{vT[0]}       ; A rows: d = 32 s + 8 (i>>2) + 4 b + (i&3)
        v_mul_u32_u24 v{vA0}, 1152, v{vT[1]}
        v_lshl_add_u32 v{vA0}, v{vG}, 4, v{vA0}
        v_add_u32 v{vA1}, {4*1152}, v{vA0}
        """)
        for es in range(6):
            a(f'buffer_load_dwordx4 {vr(vAf[rnd]+8*es,4)}, v{vA0}, s[12:15], 0 offen offset:{64*es}')
            a(f'buffer_load_dwordx4 {vr(vAf[rnd]+8*es+4,4)}, v{vA1}, s[12:15], 0 offen offset:{64*es}')
    for rnd in range(2):
        for es in range(6):
            for b in range(2):
                d = vr(vD[rnd] + 4 * b, 4)
                a(f'v_mfma_f32_16x16x32_bf16 {d}, {vr(vAf[rnd]+8*es+4*b,4)}, {vr(vBf+4*es,4)}, {"0" if es == 0 else d}')
        for r in range(8): a(f'v_mul_f32 v{vD[rnd]+r}, s{sK}, v{vD[rnd]+r}')
        for r in range(4): a(f'v_cvt_pk_bf16_f32 v{vD[rnd]+r}, v{vD[rnd]+2*r}, v{vD[rnd]+2*r+1}')
        store_off(a, rnd)
        a(f's_add_u32 s{sT0}, s{sT0}, s{sOut}')
        a(f'buffer_store_dwordx4 {vr(vD[rnd],4)}, v{vSt}, s[20:23], s{sT0} offen sc1')
    if stamps: a('s_waitcnt vmcnt(0)')
    fin(a)
    out += finalize(a)
    a = Asm()
    a('LS_vs:')
    a(f"""
    s_load_dwordx2 s[12:13], s[0:1], 24
    s_load_dwordx2 s[16:17], s[0:1], 32
    s_load_dwordx2 s[20:21], s[0:1], 56
    """)
    common(a)
    vTr2 = [12, 14]
    a(f"""
    v_lshrrev_b32 v{vT[0]}, 2, v{vLane}
    v_mul_u32_u24 v{vT[0]}, 384, v{vT[0]}
    v_and_b32 v{vT[2]}, 3, v{vLane}
    v_lshl_add_u32 v{vB}, v{vT[2]}, 4, v{vT[0]}
    """)
    for tl in range(2):
        a(f"""
        s_sub_u32 s{sEt}, s2, 30
        s_lshl_b32 s{sEt}, s{sEt}, 1
        s_add_u32 s{sEt}, s{sEt}, {tl}
        s_mul_hi_u32 s{sT0}, s{sEt}, {(2**32 + 2)//3}      ; w'
        s_mul_i32 s{sT1}, s{sT0}, 3
        s_sub_u32 s{sT1}, s{sEt}, s{sT1}                    ; et
        s_mul_i32 s{sSb}, s{sT0}, 96
        s_lshl_b32 s{sT0}, s{sT1}, 3                        ; 8 et
        s_cmp_eq_u32 s{sT1}, 2
        s_cselect_b32 s{sT2}, 32, 0
        s_cselect_b32 s{sT1}, 3, 4
        s_cselect_b32 s{sT0}, 32, s{sT0}
        s_add_u32 s{sSb}, s{sSb}, s{sT2}
        v_and_b32 v{vT[1]}, 3, v{vI}
        v_lshlrev_b32 v{vT[1]}, s{sT1}, v{vT[1]}
        v_add_u32 v{vT[1]}, s{sT0}, v{vT[1]}
        v_lshrrev_b32 v{vT[0]}, 2, v{vI}
        v_lshl_add_u32 v{vT[0]}, v{vG}, 3, v{vT[0]}
        v_lshl_add_u32 v{vTr2[tl]}, v{vT[0]}, 6, v{vT[1]}
        s_mul_i32 s{sT0}, s{sW}, {16*384}
        s_add_u32 s{sT0}, s{sT0}, s{sSb}
        s_lshl_b32 s{sT2}, s{sW}, 10
        """)
        for k in range(3):
            a(f's_add_u32 m0, s{sT2}, {12288*tl + 4096*k}')
            if k: a(f's_add_u32 s{sT0}, s{sT0}, {64*384}')
            a(f'buffer_load_dwordx4 v{vB}, s[16:19], s{sT0} offen lds', mdefs=['wo'])
    vAf = [16, 64]; vBf = [112, 136]; vD = [160, 168, 176, 184]
    for rnd in range(2):
        srnd(a, rnd)
        a(f"""
        s_lshl_b32 s{sT0}, s{sS}, 5
        v_add_u32 v{vT[0]}, s{sT0}, v{vI}
        v_mul_u32_u24 v{vA0}, 1152, v{vT[0]}
        v_lshl_add_u32 v{vA0}, v{vG}, 4, v{vA0}
        v_add_u32 v{vA1}, {16*1152}, v{vA0}
        """)
        for cs in range(6):
            a(f'buffer_load_dwordx4 {vr(vAf[rnd]+8*cs,4)}, v{vA0}, s[12:15], 0 offen offset:{768+64*cs}')
            a(f'buffer_load_dwordx4 {vr(vAf[rnd]+8*cs+4,4)}, v{vA1}, s[12:15], 0 offen offset:{768+64*cs}')
    a('s_barrier', muses=['wo'])
    for tl in range(2):
        for cs in range(6):
            for hf in range(2):
                a(f'ds_read_b64_tr_b16 {vr(vBf[tl]+4*cs+2*hf,2)}, v{vTr2[tl]} offset:{12288*tl+cs*2048+hf*256}')
    a(f's_sub_u32 s{sEt}, s2, 30\ns_mul_i32 s{sOut}, s{sEt}, 12288\ns_add_u32 s{sOut}, s{sOut}, {WVOOFF}')
    for rnd in range(2):
        for tl in range(2):
            dd = vD[2 * rnd + tl]
            for cs in range(6):
                for b in range(2):
                    d = vr(dd + 4 * b, 4)
                    a(f'v_mfma_f32_16x16x32_bf16 {d}, {vr(vAf[rnd]+8*cs+4*b,4)}, {vr(vBf[tl]+4*cs,4)}, {"0" if cs == 0 else d}')
        for tl in range(2):
            dd = vD[2 * rnd + tl]
            for r in range(4): a(f'v_cvt_pk_bf16_f32 v{dd+r}, v{dd+2*r}, v{dd+2*r+1}')
            store_off(a, rnd)
            a(f's_add_u32 s{sT0}, s{sT0}, s{sOut}')
            a(f's_add_u32 s{sT0}, s{sT0}, {6144*tl}')
            a(f'buffer_store_dwordx4 {vr(dd,4)}, v{vSt}, s[20:23], s{sT0} offen sc1')
    if stamps: a('s_waitcnt vmcnt(0)')
    fin(a)
    out += finalize(a)
    a = Asm()
    a(f"""
    LS_code:
    v_lshrrev_b32 v{vT[0]}, 6, v0
    v_and_b32 v{vLane}, 63, v0
    v_lshlrev_b32 v{vT[0]}, 13, v{vT[0]}
    v_lshl_add_u32 v{vT[0]}, v{vLane}, 7, v{vT[0]}
    s_getpc_b64 s[44:45]
    LA_pc:
    s_sub_u32 s44, s44, LA_pc-LA_start
    s_subb_u32 s45, s45, 0
    v_add_u32 v{vT[1]}, 32768, v{vT[0]}
    v_min_u32 v{vT[0]}, LB_end-LA_start-4, v{vT[0]}
    v_min_u32 v{vT[1]}, LB_end-LA_start-4, v{vT[1]}
    global_load_dword v20, v{vT[0]}, s[44:45]
    global_load_dword v21, v{vT[1]}, s[44:45]
    s_endpgm
    """)
    out += finalize(a)
    head = """  s_cmp_lt_u32 s2, 18
  s_cbranch_scc1 LS_vt
  s_cmp_lt_u32 s2, 30
  s_cbranch_scc1 LS_qk
  s_cmp_lt_u32 s2, 36
  s_cbranch_scc1 LS_vs
  s_branch LS_code
"""
    return head + out

def build_A(name, stamps=False, dbg=()):
    s = f""".globl {name}
.p2align 8
.type {name},@function
{name}:
LA_start:
  s_cmp_ge_u32 s2, 256
  s_cbranch_scc1 LA_end
  s_cmp_lt_u32 s2, {NSPARE}
  s_cbranch_scc1 LA_spare
"""
    s += build_main(stamps, dbg)
    s += wspin()
    s += 'LA_spare:\n' + build_spare(stamps)
    s += 'LA_end:\n  s_endpgm\n'
    return s
```

```python
from asmb import *
from common import *

WREG = 36864
SL = 12288
GI = 135168
LI = 153600
LX = 161792
LDS_B = 162560
NSTEP = 10

def build_main(fallback=True, stamps=False, dbg=(), D=3, NB=5, fused=None):
    if fused is None:
        a = Asm()
        stp = Stamps(a, stamps, 1)
        stp.start()
        if 'clk' in dbg: dbg_clock_start(a)
    else:
        a, stp = fused
    SC = ' sc1' if fused else ''
    sW, sT, sQb, sT0, sT1, sT2, sWB = 24, 25, 26, 27, 28, 29, 30
    sOff, sTB, sEnd, sBeg = 31, 32, 33, 34
    sFb = 35; sOff0 = 43; sIt = 44
    sH = [36, 37, 38, 39]
    sX = [40, 41, 42]
    vLane, vG, vI = 1, 2, 3
    vT = [4, 5, 6, 7, 8, 9]
    vK = [10, 11]; vV = [12, 13, 14, 15]; vD = [16, 17, 18]
    vX1b = 19; vPl = 20; vX1a = 26; vOa = 27
    vJunk = 111
    vNeg = 28; vP = 40; vS = 64; vO = 112
    aG, aF, aL, aOne, aQuart, aId, aW, aPart = 0, 72, 104, 116, 120, 122, 128, 200
    aAdr = 96
    assert NB <= 6
    def Sreg(buf, kt, qt): return vS + buf * 24 + (kt * 3 + qt) * 4
    def Preg(buf, qt): return vP + buf * 12 + qt * 4
    def Oreg(n, qt): return vO + (n * 3 + qt) * 4
    WS = 's[20:23]'; OUT = 's[48:51]' if fused else 's[16:19]'
    if not fused:
        a(f"""
        s_load_dwordx2 s[20:21], s[0:1], 56
        s_load_dwordx2 s[16:17], s[0:1], 40
        v_lshrrev_b32 v{vT[0]}, 6, v0
        v_and_b32 v{vLane}, 63, v0
        v_readfirstlane_b32 s{sW}, v{vT[0]}
        s_mov_b32 s22, {WSUSE}
        s_mov_b32 s23, 0x00020000
        """)
    a(f"""
    v_lshlrev_b32 v{vD[0]}, 4, v{vLane}
    s_and_b32 s{sT}, s2, 7
    s_lshr_b32 s{sQb}, s2, 3
    s_mul_i32 s{sTB}, s{sT}, {TIMG}
    s_mul_i32 s{sWB}, s{sW}, {WREG}
    """)
    for idx in range(2):
        g_, l_ = sH[2*idx], sH[2*idx+1]
        if idx == 0: a(f's_mov_b32 s{sT0}, s{sW}')
        else: a(f's_and_b32 s{sT0}, s{sW}, 1\ns_add_u32 s{sT0}, s{sT0}, 4')
        a(f"""
        s_mul_i32 s{sT1}, s{sQb}, 6
        s_add_u32 s{sT1}, s{sT1}, s{sT0}        ; kb
        s_lshr_b32 s{sT2}, s{sT1}, 2
        s_mul_i32 s{sT2}, s{sT2}, 12288
        s_and_b32 s{sT1}, s{sT1}, 3
        s_lshl_b32 s{sT1}, s{sT1}, 10
        s_add_u32 s{sT2}, s{sT2}, s{sT1}
        s_add_u32 s{g_}, s{sT2}, s{sTB}
        s_and_b32 s{sT1}, s{sT0}, 1
        s_lshl_b32 s{sT1}, s{sT1}, 10
        """)
        if idx == 0:
            a(f"""
            s_lshr_b32 s{sT2}, s{sT0}, 1
            s_mul_i32 s{sT2}, s{sT2}, 6144
            s_add_u32 s{sT1}, s{sT1}, s{sT2}
            s_add_u32 s{l_}, s{sT1}, {24576 if fused else 12288}
            """)
        else:
            a(f's_add_u32 s{l_}, s{sT1}, {61440 if fused else 12288 + 2*6144}')
    a(f"""
    s_mul_i32 s{sT0}, s{sW}, 6144
    s_add_u32 s{sX[0]}, s{sT0}, {WQKOFF}
    s_add_u32 s{sX[1]}, s{sX[0]}, 24576
    s_add_u32 s{sX[2]}, s{sX[0]}, 49152
    v_add_u32 v{vD[1]}, 4096, v{vD[0]}
    v_add_u32 v{vD[2]}, 8192, v{vD[0]}
    """)
    hq_items = []
    for idx in range(2):
        g_, l_ = sH[2*idx], sH[2*idx+1]
        for p in range(3):
            hq_items.append((f's_add_u32 m0, s{l_}, {p*2048}', (), ()))
            hq_items.append((f'buffer_load_dwordx4 v{vD[p]}, {WS}, s{g_} offen{SC} lds', ('hq',), ()))
    if not fused:
        for t_, md, mu in hq_items: a(t_, mdefs=md, muses=mu)
    def wqk_load(s, j): return (f'buffer_load_dwordx4 {ar(aW+(j*6+s)*4,4)}, v{vD[s>>2]}, {WS}, s{sX[j]} offen offset:{(s&3)*1024}', (), ())
    if 'nopf' not in dbg and not fused:
        a(f"""
        s_mul_i32 s{sT0}, s{sQb}, 22
        v_add_u32 v{vT[0]}, s{sT0}, v{vLane}
        v_cmp_gt_u32 vcc, 22, v{vLane}
        v_lshlrev_b32 v{vT[0]}, 7, v{vT[0]}
        s_cmp_lt_u32 s{sW}, 2
        s_mov_b32 s{sT0}, {WVOOFF}
        s_cselect_b32 s{sT0}, {WQKOFF}, s{sT0}
        v_mov_b32 v{vT[1]}, 0x7fffffff
        v_cndmask_b32 v{vT[0]}, v{vT[1]}, v{vT[0]}, vcc
        """)
        a(f'buffer_load_dword v{vJunk}, v{vT[0]}, {WS}, s{sT0} offen')
    npre = 6
    for x in dbg:
        if x.startswith('wpre'): npre = int(x[4:])
    wq_all = [wqk_load(s, j) for s in range(6) for j in range(3)] if not fused else []
    left_items = []
    def L(t_, md=(), mu=()): left_items.append((t_, md, mu))
    for t_ in f"""s_lshr_b32 s{sH[0]}, s{sW}, 1
    s_lshl_b32 s{sH[1]}, s{sH[0]}, 12
    s_lshl_b32 s{sH[0]}, s{sH[0]}, 11
    s_and_b32 s{sH[2]}, s{sW}, 1
    s_lshl_b32 s{sH[2]}, s{sH[2]}, 10
    s_add_u32 s{sH[1]}, s{sH[1]}, s{sH[2]}
    s_add_u32 s{sH[0]}, s{sH[0]}, s{sH[2]}
    s_add_u32 s{sH[3]}, s{sTB}, {40*12288}
    s_add_u32 s{sH[1]}, s{sH[1]}, s{sH[3]}
    s_add_u32 m0, s{sH[0]}, {LI}""".split('\n'): L(t_.strip())
    L(f'buffer_load_dwordx4 v{vD[0]}, {WS}, s{sH[1]} offen{SC} lds', ('left',))
    for t_ in f"""s_add_u32 s{sH[1]}, s{sH[3]}, s{sH[2]}
    s_add_u32 s{sH[1]}, s{sH[1]}, 8192
    s_add_u32 m0, s{sH[2]}, {LI + 4096}""".split('\n'): L(t_.strip())
    L(f'buffer_load_dwordx4 v{vD[0]}, {WS}, s{sH[1]} offen{SC} lds', ('left',))
    stp.stamp('issued')
    a(f"""
    v_lshrrev_b32 v{vG}, 4, v{vLane}
    v_and_b32 v{vI}, 15, v{vLane}
    v_lshrrev_b32 v{vT[0]}, 3, v{vI}
    v_lshlrev_b32 v{vT[0]}, 10, v{vT[0]}
    v_and_b32 v{vT[1]}, 7, v{vI}
    v_lshl_add_u32 v{vT[0]}, v{vT[1]}, 7, v{vT[0]}
    v_bfe_u32 v{vT[1]}, v{vI}, 1, 2
    v_lshlrev_b32 v{vT[1]}, 1, v{vT[1]}          ; swz(i&7)
    v_xor_b32 v{vT[1]}, v{vT[1]}, v{vG}
    v_lshl_add_u32 v{vT[4]}, v{vT[1]}, 4, v{vT[0]}
    v_xor_b32 v{vT[5]}, 64, v{vT[4]}                   ; odd s
    s_mul_i32 s{sBeg}, s{sW}, {10*SL}
    s_add_u32 s{sBeg}, s{sBeg}, s{sTB}
    s_add_u32 s{sEnd}, s{sBeg}, {10*SL}
    s_mul_hi_u32 s{sT0}, s{sQb}, {(2**32+9)//10}
    s_mul_i32 s{sT0}, s{sT0}, 10
    s_sub_u32 s{sT0}, s{sQb}, s{sT0}          ; rot = qb % 10
    s_mul_i32 s{sT0}, s{sT0}, {SL}
    s_add_u32 s{sOff}, s{sBeg}, s{sT0}
    s_mov_b32 s{sOff0}, s{sOff}
    """)
    a_main = a
    a = Asm()
    a(f"""
    {'' if fused else f's_mov_b32 s18, {XBYTES}'}
    {'' if fused else 's_mov_b32 s19, 0x00020000'}
    s_mov_b32 s{sFb}, 0
    v_add_u32 v{vK[0]}, s{sWB}, v{vT[4]}
    v_add_u32 v{vK[1]}, s{sWB}, v{vT[5]}
    v_lshrrev_b32 v{vT[0]}, 1, v{vG}
    v_lshlrev_b32 v{vT[0]}, 10, v{vT[0]}
    v_and_b32 v{vT[1]}, 1, v{vG}
    v_lshlrev_b32 v{vT[1]}, 2, v{vT[1]}
    v_lshrrev_b32 v{vT[2]}, 2, v{vI}
    v_add_u32 v{vT[1]}, v{vT[1]}, v{vT[2]}       ; r
    v_lshl_add_u32 v{vT[0]}, v{vT[1]}, 7, v{vT[0]}
    v_bfe_u32 v{vT[1]}, v{vT[1]}, 1, 2
    v_lshlrev_b32 v{vT[1]}, 1, v{vT[1]}          ; swz(r)
    v_bfe_u32 v{vT[2]}, v{vI}, 1, 1
    v_xor_b32 v{vT[1]}, v{vT[1]}, v{vT[2]}       ; swz ^ b
    v_and_b32 v{vT[2]}, 1, v{vI}
    v_lshl_add_u32 v{vT[0]}, v{vT[2]}, 3, v{vT[0]}
    v_add_u32 v{vT[0]}, s{sWB}, v{vT[0]}
    """)
    for jj in range(4):
        a(f"""
        s_xor_b32 s{sT0}, s{sW}, {jj}
        s_lshl_b32 s{sT0}, s{sT0}, 1
        v_xor_b32 v{vT[2]}, s{sT0}, v{vT[1]}
        v_lshl_add_u32 v{vV[jj]}, v{vT[2]}, 4, v{vT[0]}
        """)
    a(f"""
    v_mov_b32 v{vT[0]}, 0x3f803f80
    v_mov_b32 v{vT[1]}, 0x3e803e80
    v_accvgpr_write_b32 a{aOne}, v{vT[0]}
    v_accvgpr_write_b32 a{aOne+1}, v{vT[0]}
    v_accvgpr_write_b32 a{aOne+2}, v{vT[0]}
    v_accvgpr_write_b32 a{aOne+3}, v{vT[0]}
    v_accvgpr_write_b32 a{aQuart}, v{vT[1]}
    v_accvgpr_write_b32 a{aQuart+1}, v{vT[1]}
    v_lshrrev_b32 v{vT[0]}, 2, v{vI}
    v_cmp_eq_u32 vcc, v{vT[0]}, v{vG}
    v_and_b32 v{vT[1]}, 3, v{vI}
    v_mov_b32 v{vT[2]}, 0x3f80
    v_cndmask_b32 v{vT[2]}, 0, v{vT[2]}, vcc
    v_and_b32 v{vT[0]}, 1, v{vT[1]}
    v_lshlrev_b32 v{vT[0]}, 4, v{vT[0]}
    v_lshlrev_b32 v{vT[2]}, v{vT[0]}, v{vT[2]}        ; 0x3f80 << 16*(j&1)
    v_cmp_gt_u32 vcc, 2, v{vT[1]}
    s_lshr_b32 s{sT0}, s{sW}, 1
    s_lshl_b32 s{sT0}, s{sT0}, 10
    v_cndmask_b32 v{vT[0]}, 0, v{vT[2]}, vcc
    v_cndmask_b32 v{vT[1]}, v{vT[2]}, 0, vcc
    v_accvgpr_write_b32 a{aId}, v{vT[0]}
    v_accvgpr_write_b32 a{aId+1}, v{vT[1]}
    v_accvgpr_write_b32 a{aId+2}, v{vT[0]}
    v_accvgpr_write_b32 a{aId+3}, v{vT[1]}
    s_and_b32 s{sT1}, s{sW}, 1
    s_lshl_b32 s{sT1}, s{sT1}, 3
    s_add_u32 s{sT0}, s{sT0}, s{sT1}
    s_add_u32 s{sT1}, s{sT0}, {GI}
    v_add_u32 v{vT[0]}, s{sT1}, v{vD[0]}
    v_add_u32 v{vOa}, s{sT0}, v{vD[0]}
    v_add_u32 v{vT[1]}, {GI}, v{vD[0]}
    """)
    a(f"""
    s_mul_i32 s{sT2}, s{sQb}, 48
    v_add_u32 v{vNeg}, s{sT2}, v{vI}
    s_mul_i32 s{sT1}, s{sT}, 1296
    v_add_u32 v{vNeg+1}, s{sT1}, v{vNeg}                  ; row
    v_lshlrev_b32 v{vNeg+2}, 3, v{vNeg+1}
    v_accvgpr_write_b32 a{aAdr+6}, v{vNeg+2}
    v_mul_u32_u24 v{vX1a}, 384, v{vNeg+1}
    s_mul_i32 s{sT2}, s{sW}, 96
    v_lshlrev_b32 v{vNeg+2}, 4, v{vG}
    v_add3_u32 v{vX1a}, v{vX1a}, v{vNeg+2}, s{sT2}        ; row*384 + 96w + 16g
    v_lshlrev_b32 v{vNeg+2}, 3, v{vG}
    v_sub_u32 v{vX1b}, v{vX1a}, v{vNeg+2}
    s_mul_i32 s{sT2}, s{sW}, 6
    v_add_u32 v{vNeg+3}, s{sT2}, v{vG}                    ; U  (et 0,1)
    v_lshrrev_b32 v{vNeg+4}, 1, v{vG}
    v_add3_u32 v{vNeg+4}, v{vNeg+4}, s{sT2}, 4            ; U2 (et 2)
    v_lshrrev_b32 v{vNeg+5}, 3, v{vNeg+3}
    v_lshlrev_b32 v{vNeg+5}, 12, v{vNeg+5}                ; p*4096
    v_lshrrev_b32 v{vNeg+6}, 3, v{vNeg+4}
    v_lshlrev_b32 v{vNeg+6}, 12, v{vNeg+6}
    v_and_b32 v{vNeg+7}, 1, v{vG}
    v_lshl_add_u32 v{vNeg+6}, v{vNeg+7}, 3, v{vNeg+6}     ; p2*4096 + 8*(g&1)
    v_and_b32 v{vNeg+3}, 7, v{vNeg+3}
    v_and_b32 v{vNeg+4}, 7, v{vNeg+4}
    v_bfe_u32 v{vNeg+7}, v{vNeg}, 1, 2
    v_lshlrev_b32 v{vNeg+7}, 1, v{vNeg+7}
    v_xor_b32 v{vNeg+3}, v{vNeg+3}, v{vNeg+7}
    v_xor_b32 v{vNeg+4}, v{vNeg+4}, v{vNeg+7}
    v_lshl_add_u32 v{vNeg+5}, v{vNeg+3}, 4, v{vNeg+5}
    v_lshl_add_u32 v{vNeg+6}, v{vNeg+4}, 4, v{vNeg+6}
    """)
    for qt in range(3):
        a(f"""
        v_add_u32 v{vNeg+8}, {16*qt}, v{vNeg}
        v_lshrrev_b32 v{vNeg+9}, 5, v{vNeg+8}
        v_mul_u32_u24 v{vNeg+9}, 12288, v{vNeg+9}
        v_and_b32 v{vNeg+8}, 31, v{vNeg+8}
        v_lshl_add_u32 v{vNeg+9}, v{vNeg+8}, 7, v{vNeg+9}
        v_add_u32 v{vNeg+8}, v{vNeg+9}, v{vNeg+5}
        v_add_u32 v{vNeg+9}, v{vNeg+9}, v{vNeg+6}
        v_accvgpr_write_b32 a{aAdr+2*qt}, v{vNeg+8}
        v_accvgpr_write_b32 a{aAdr+2*qt+1}, v{vNeg+9}
        """)
    late_setup = a.ins
    a = a_main
    if 'latefill' not in dbg:
        a.ins.extend(late_setup); late_setup = []
    def dma_panel(j, p):
        sl = j % 3; out = []
        R_ = (('ring', j),)
        out.append((f's_add_u32 m0, s{sWB}, {sl*SL + p*4096}', (), R_))
        for kb in range(4):
            out.append((f'buffer_load_dwordx4 v{vD[p]}, {WS}, s{sOff} offen offset:{kb*1024}{SC} lds', (('K', j, p),), (('rdV', j - 3, p),) + R_))
        if p == 2:
            out.append((f's_add_u32 s{sOff}, s{sOff}, {SL}', (), R_))
            out.append((f's_cmp_eq_u32 s{sOff}, s{sEnd}', (), R_))
            out.append((f's_cselect_b32 s{sOff}, s{sBeg}, s{sOff}', (), R_))
        return out
    ring_log = []
    def is_ring(it): return any(isinstance(x, tuple) and x[0] == 'ring' for x in it[2])
    def pop(q, n=1):
        while q and n > 0:
            it = q.pop(0); t_, md, mu = it; a(t_, mdefs=md, muses=mu)
            if is_ring(it): ring_log.append(t_)
            if not t_.startswith('s_'): n -= 1
        while q and q[0][0].startswith('s_') and 'm0' not in q[0][0] and ('cselect' in q[0][0] or 'cmp' in q[0][0] or f's{sOff}, s{sOff}' in q[0][0]):
            it = q.pop(0); t_, md, mu = it; a(t_, mdefs=md, muses=mu)
            if is_ring(it): ring_log.append(t_)
    if fused:
        stp.stamp('Bsetup')
        a(f"""
        s_waitcnt vmcnt(0)
        s_barrier
        """)
        stp.stamp('drained')
        a(f"""
        s_cmp_lg_u32 s{sW}, 0
        s_cbranch_scc1 LF_wait
        s_and_b32 s{sT0}, s2, 3
        s_lshl_b32 s{sT0}, s{sT0}, 6
        v_mov_b32 v{vT[0]}, 1
        v_mov_b32 v{vT[1]}, s{sT0}
        v_lshlrev_b32 v{vT[3]}, 6, v{vLane}
        s_mov_b64 exec, 1
        buffer_atomic_add v{vT[0]}, v{vT[1]}, s[52:55], 0 offen
        s_mov_b64 exec, 15
        s_mov_b32 s94, 0
        LF_poll:
        buffer_load_dword v{vT[0]}, v{vT[3]}, s[52:55], 0 offen sc1
        s_add_u32 s94, s94, 1
        s_waitcnt vmcnt(0)
        v_readlane_b32 s{sT0}, v{vT[0]}, 0
        v_readlane_b32 s{sT1}, v{vT[0]}, 1
        v_readlane_b32 s{sT2}, v{vT[0]}, 2
        v_readlane_b32 s95, v{vT[0]}, 3
        s_cmp_ge_u32 s94, 0x40000
        s_cbranch_scc1 LF_wait
        s_nop 2
        s_add_u32 s{sT0}, s{sT0}, s{sT1}
        s_add_u32 s{sT2}, s{sT2}, s95
        s_add_u32 s{sT0}, s{sT0}, s{sT2}
        s_cmp_ge_u32 s{sT0}, {CNT_A}
        s_cbranch_scc1 LF_wait
        s_sleep 1
        s_branch LF_poll
        LF_wait:
        s_mov_b64 exec, -1
        s_barrier
        """)
        stp.stamp('synced')
        a(f"""
        s_lshr_b32 s{sT0}, s{sW}, 1
        s_lshl_b32 s{sT0}, s{sT0}, 10
        s_and_b32 s{sT1}, s{sW}, 1
        s_lshl_b32 s{sT1}, s{sT1}, 3
        s_add_u32 s{sT0}, s{sT0}, s{sT1}
        s_add_u32 s{sT1}, s{sT0}, {GI}
        v_add_u32 v{vT[0]}, s{sT1}, v{vD[0]}
        v_add_u32 v{vT[1]}, {GI}, v{vD[0]}
        """)
        a(f'v_add_u32 v{vT[2]}, 61440, v{vT[4]}\nv_add_u32 v{vT[3]}, 61440, v{vT[5]}')
        for t_, md, mu in hq_items: a(t_, mdefs=md, muses=mu)
        pre_q = left_items + [it for p in range(3) for it in dma_panel(0, p)]
        pop(pre_q, 99)
    for _ in range(npre if not fused else 0): a(wq_all.pop(0)[0])
    a('s_barrier', muses=['hq'])
    stp.stamp('hqbar')
    vHq = vO
    for s in range(6):
        for qt in range(3):
            if fused and qt == 2:
                a(f'ds_read_b128 {vr(vHq+(qt*6+s)*4,4)}, v{vT[2+(s&1)]} offset:{(s>>1)*2048}')
            else:
                base = (24576 if fused else 12288) + qt * 6144
                a(f'ds_read_b128 {vr(vHq+(qt*6+s)*4,4)}, v{vT[4+(s&1)]} offset:{base+(s>>1)*2048}')
    def Greg(j, qt): return vS + (j * 3 + qt) * 4
    pend = wq_all + left_items + [it for p in range(3) for it in dma_panel(0, p)]
    if fused: pend = [it for p in range(3) for it in dma_panel(1, p)]
    if not fused: pop(pend, max(0, 6 - npre))
    cnt = 0
    nl_ = len(late_setup); ldone = 0
    for s in range(6):
        for j in range(3):
            for qt in range(3):
                d = vr(Greg(j, qt), 4)
                a(f'v_mfma_f32_16x16x32_bf16 {d}, {ar(aW+(j*6+s)*4,4)}, {vr(vHq+(qt*6+s)*4,4)}, {"0" if s == 0 else d}')
                cnt += 1
                want = (nl_ * cnt) // 52
                pending_scc = False
                while ldone < min(want, nl_) or (ldone < nl_ and late_setup[ldone].op.startswith('s_cselect')):
                    a.ins.append(late_setup[ldone]); ldone += 1
                if qt == 0 and ('latefill' not in dbg): pop(pend)
                if qt == 2 and (cnt // 3) % 3 != 0 and 'latefill' in dbg: pop(pend)
    while ldone < nl_:
        a.ins.append(late_setup[ldone]); ldone += 1
    for j in range(3):
        for qt in range(3):
            b = Greg(j, qt)
            a(f'v_cvt_pk_bf16_f32 v{b}, v{b}, v{b+1}')
            a(f'v_cvt_pk_bf16_f32 v{b+1}, v{b+2}, v{b+3}')
            a(f'ds_write_b64 v{vT[0]}, {vr(b,2)} offset:{(qt*6+2*j)*1024}', mdefs=['gimg'])
    stp.stamp('G')
    a('s_barrier', muses=['gimg', 'left'])
    a(f"""
    v_add_u32 v{vT[4]}, {LI}, v{vT[4]}
    v_add_u32 v{vT[5]}, {LI}, v{vT[5]}
    """)
    vLk = vO
    if not fused: pend = pend + [it for p in range(3) for it in dma_panel(1, p)]
    for s in range(6):
        for qt in range(3):
            a(f'ds_read_b128 {ar(aG+(qt*6+s)*4,4)}, v{vT[1]} offset:{(qt*6+s)*1024}', mdefs=['grd'])
        a(f'ds_read_b128 {vr(vLk+4*s,4)}, v{vT[4+(s&1)]} offset:{(s>>1)*2048}')
        if s < 3: pop(pend)
    for s in range(6):
        for qt in range(3):
            d = vr(Sreg(1, 0, qt), 4)
            a(f'v_mfma_f32_16x16x32_bf16 {d}, {vr(vLk+4*s,4)}, {ar(aG+(qt*6+s)*4,4)}, {"0" if s == 0 else d}')
        pop(pend)
    a('s_barrier', muses=['grd'])
    stp.stamp('Sleft')
    m = [vT[0], vT[1], vT[2]]; m2 = [vT[3], vT[4], vT[5]]
    for qt in range(3):
        b = Sreg(1, 0, qt)
        a(f'v_max3_f32 v{m[qt]}, v{b}, v{b+1}, v{b+2}')
        a(f'v_max_f32 v{m[qt]}, v{m[qt]}, v{b+3}')
        a(f'v_mov_b32 v{m2[qt]}, v{m[qt]}')
    pop(pend)
    for qt in range(3): a(f'v_permlane16_swap_b32 v{m[qt]}, v{m2[qt]}')
    for qt in range(3):
        a(f'v_max_f32 v{m[qt]}, v{m[qt]}, v{m2[qt]}')
        a(f'v_mov_b32 v{m2[qt]}, v{m[qt]}')
    pop(pend)
    for qt in range(3): a(f'v_permlane32_swap_b32 v{m[qt]}, v{m2[qt]}')
    for qt in range(3):
        a(f'v_max_f32 v{m[qt]}, v{m[qt]}, v{m2[qt]}')
    for qt in range(3):
        for r in range(4):
            a(f'v_sub_f32 v{vNeg+4*qt+r}, 0, v{m[qt]}')
    stp.stamp('pre')
    if fallback: a('LB_pre:')
    groups = []
    for n in range(12): groups.append(('X', 0, n))
    for n in range(4): groups.append(('P', 0, n))
    for i in range(NSTEP):
        if i + 1 < NSTEP:
            for n in range(12): groups.append(('X', i + 1, n))
        for n in range(12): groups.append(('Y', i, n))
        groups.append(('L', i, 0))
    NG = len(groups)
    gidx = {g: k for k, g in enumerate(groups)}
    last_order = [1, 2, 3, 5, 6, 7, 9, 10, 11, 0, 4, 8]
    def yreg(j, n): return last_order[n] if j == NSTEP - 1 else n
    fbuf = {}; nbuf = [0]
    vLv = vT[5]
    def frag_reads(g):
        kind, j, n = g
        if kind == 'L' or (kind == 'P' and n == 3): return []
        b = aF + 4 * (nbuf[0] % NB); nbuf[0] += 1
        fbuf[g] = b
        sl = j % 3
        tag = ('F', g)
        if kind == 'X':
            s, kt = divmod(n, 2)
            return [(f'ds_read_b128 {ar(b,4)}, v{vK[s&1]} offset:{sl*SL+(s>>1)*4096+kt*2048}', (tag,), (('K', j, s >> 1),))]
        if kind == 'P':
            return [(f'ds_read_b64_tr_b16 {ar(b,2)}, v{vLv} offset:{n*2048}', (tag,), ())]
        R = yreg(j, n); p, jj = divmod(R, 4)
        return [(f'ds_read_b64_tr_b16 {ar(b+2*hf,2)}, v{vV[jj]} offset:{sl*SL+p*4096+hf*2048}', (tag, ('rdV', j, p)), (('K', j, p),)) for hf in range(2)]
    def mfmas(g):
        kind, j, n = g
        out = []
        for qt in range(3):
            if kind == 'X':
                s, kt = divmod(n, 2)
                d = vr(Sreg(j & 1, kt, qt), 4)
                c = vr(vNeg + 4 * qt, 4) if s == 0 else d
                out.append(f'v_mfma_f32_16x16x32_bf16 {d}, {ar(fbuf[g],4)}, {ar(aG+(qt*6+s)*4,4)}, {c}')
            elif kind == 'Y':
                R = yreg(j, n)
                d = vr(Oreg(R, qt), 4)
                c = '0' if (j == 0 and R % 4 != 0) else d
                out.append(f'v_mfma_f32_16x16x32_bf16 {d}, {ar(fbuf[g],4)}, {vr(Preg(j&1,qt),4)}, {c}')
            elif kind == 'L':
                d = ar(aL + 4 * qt, 4)
                out.append(f'v_mfma_f32_16x16x32_bf16 {d}, {ar(aOne,4)}, {vr(Preg(j&1,qt),4)}, {d}')
            elif n < 3:
                out.append(f'v_mfma_f32_16x16x16_bf16 {vr(Oreg(4*n,qt),4)}, {ar(fbuf[g],2)}, {vr(vPl+2*qt,2)}, 0')
            else:
                out.append(f'v_mfma_f32_16x16x16_bf16 {ar(aL+4*qt,4)}, {ar(aQuart,2)}, {vr(vPl+2*qt,2)}, 0')
        return out
    plan = [dict(exp=[], lo=[], mem=[]) for _ in range(NG + 8)]
    def put(k, cls, text, md=(), mu=()): plan[k][cls].append((text, md, mu))
    k0 = gidx[('X', 0, 0)]
    e = 0
    for qt in range(3):
        b = Sreg(1, 0, qt)
        for r in range(4): put(k0 + e // 2, 'lo', f'v_add_f32 v{b+r}, v{b+r}, v{vNeg+4*qt}'); e += 1
    e = 0
    for qt in range(3):
        b = Sreg(1, 0, qt)
        for r in range(4):
            put(k0 + 1 + (e * 7) // 12, 'exp', f'v_exp_f32 v{b+r}, v{b+r}'); e += 1
        put(k0 + 3 + (e * 7) // 12 - 1, 'lo', f'v_cvt_pk_bf16_f32 v{vPl+2*qt}, v{b}, v{b+1}')
        put(k0 + 3 + (e * 7) // 12 - 1, 'lo', f'v_cvt_pk_bf16_f32 v{vPl+2*qt+1}, v{b+2}, v{b+3}')
    put(k0 + 2, 'lo', f'v_subrev_u32 v{vLv}, s{sWB}, v{vV[0]}')
    put(k0 + 2, 'lo', f'v_add_u32 v{vLv}, {LI}, v{vLv}')
    dma_groups = set()
    for j in range(3, NSTEP):
        y0 = gidx[('Y', j - 3, 0)]; base = y0 - 12; nb = base + 25
        dma_groups |= {base + 16, base + 18, base + 20, base + 22, base + 24, nb + 1, nb + 3, nb + 5, nb + 7, nb + 9, nb + 11, nb + 13}
    for j in range(NSTEP):
        start = gidx[('X', j, 11)] + 1
        end = gidx[('Y', j, 0)]
        ng = end - start
        buf = j & 1
        items = [(kt, qt, r) for kt in range(2) for qt in range(3) for r in range(4)]
        span = max(ng - 2, 1)
        free = [kk for kk in range(start, end - 1) if kk not in dma_groups]
        for e, (kt, qt, r) in enumerate(items):
            k = start + (e * span) // 24
            if 'expfree' in dbg and len(free) >= 11: k = free[(e * len(free)) // 24]
            b = Sreg(buf, kt, qt)
            if 'noexp' not in dbg: put(k, 'exp', f'v_exp_f32 v{b+r}, v{b+r}')
            if r & 1 and 'nocvt' not in dbg:
                pz = Preg(buf, qt) + 2 * kt + (r >> 1)
                put(min(k + 1, end - 1), 'lo', f'v_cvt_pk_bf16_f32 v{pz}, v{b+r-1}, v{b+r}')
    def place_dma(items, ks):
        it = list(items)
        m0 = it.pop(0)
        for q in range(4):
            if q == 0: put(ks[0], 'mem', *m0)
            d = it.pop(0)
            if 'nodma' in dbg: continue
            put(ks[q], 'mem', *d)
        for x in it: put(ks[3] + 1, 'mem', *x)
    kk = k0
    rest = pend
    while rest:
        x = rest.pop(0); put(kk, 'mem', *x)
        if not x[0].startswith('s_'): kk += 1
    k2 = kk
    for p in range(3):
        place_dma(dma_panel(2, p), [k2 + 4 * p + q for q in range(4)])
    for j in range(3, NSTEP):
        b = j - 3
        y0 = gidx[('Y', b, 0)]
        base = y0 - 12
        nb = base + 25
        place_dma(dma_panel(j, 0), [base + 16, base + 18, base + 20, base + 22])
        place_dma(dma_panel(j, 1), [base + 24, nb + 1, nb + 3, nb + 5])
        place_dma(dma_panel(j, 2), [nb + 7, nb + 9, nb + 11, nb + 13])
    kw = gidx[('Y', 7, 2)]
    put(kw, 'mem', f's_mul_i32 s{sT0}, s{sW}, 18432')
    put(kw, 'mem', f's_add_u32 s{sT0}, s{sT0}, {WVOOFF}')
    put(kw, 'mem', f's_add_u32 s{sT1}, s{sT0}, 12288')
    for c in range(18):
        so = sT0 if c < 12 else sT1; cc = c % 12
        put(kw + 1 + c, 'mem', f'buffer_load_dwordx4 {ar(aW+c*4,4)}, v{vD[cc>>2]}, {WS}, s{so} offen offset:{(cc&3)*1024}{SC}')
    kx = gidx[('Y', 8, 0)]
    vXr = vS
    vSt = vS + 18
    put(kx - 2, 'lo', f's_mov_b32 s{sX[1]}, {STATOFF}')
    put(kx - 2, 'lo', f'v_accvgpr_read_b32 v{vT[3]}, a{aAdr+6}')
    for qt in range(3):
        kq = kx + 3 * qt
        put(kq - 1, 'lo', f'v_accvgpr_read_b32 v{vT[4]}, a{aAdr+2*qt}')
        put(kq - 1, 'lo', f'v_accvgpr_read_b32 v{vT[5]}, a{aAdr+2*qt+1}')
        put(kq, 'mem', f'buffer_load_dwordx4 {vr(vXr+qt*6,4)}, v{vT[4]}, {WS}, s{sTB} offen{SC}')
        put(kq + 1, 'mem', f'buffer_load_dwordx2 {vr(vXr+qt*6+4,2)}, v{vT[5]}, {WS}, s{sTB} offen{SC}')
        put(kq + 2, 'mem', f'buffer_load_dwordx2 {vr(vSt+2*qt,2)}, v{vT[3]}, {WS}, s{sX[1]} offen offset:{128*qt}{SC}')
    vPw = vT[0]
    ky = gidx[('Y', NSTEP - 1, 0)]
    put(ky - 1, 'lo', f'v_lshlrev_b32 v{vPw}, 3, v{vLane}')
    put(ky - 1, 'lo', f'v_add_u32 v{vPw}, s{sWB}, v{vPw}')
    for n in range(9):
        R = last_order[n]; p, jj = divmod(R, 4)
        for qt in range(3):
            o = Oreg(R, qt)
            put(ky + n + 2, 'lo', f'v_cvt_pk_bf16_f32 v{o}, v{o}, v{o+1}')
            put(ky + n + 2, 'lo', f'v_cvt_pk_bf16_f32 v{o+1}, v{o+2}, v{o+3}')
            put(ky + n + 2, 'lo', f'ds_write_b64 v{vPw}, {vr(o,2)} offset:{SL+((jj-1)*9+p*3+qt)*512}', ('part',), ())
    for k in range(D):
        for t_, md, mu in frag_reads(groups[k]): a(t_, mdefs=md, muses=mu)
    def emit(lst):
        for t_, md, mu in lst: a(t_, mdefs=md, muses=mu)
    for k, g in enumerate(groups):
        kind, j, n = g
        if kind == 'Y' and n == 0 and j in (0, 4, 8): stp.stamp(f'Y{j}')
        rd = frag_reads(groups[k + D]) if k + D < NG else []
        if 'nords' in dbg: rd = []
        mf = mfmas(g)
        pl = plan[k]
        ex, lo, mem = list(pl['exp']), list(pl['lo']), list(pl['mem'])
        emit(rd[:1])
        if 'loA' in dbg and lo and not (kind == 'Y' and j == NSTEP - 1):
            emit(lo[:1]); lo = lo[1:]
        mu0 = []
        if 'pairwait' in dbg and k % 2 == 0 and k + 1 < NG and groups[k + 1] in fbuf: mu0 = [('F', groups[k + 1])]
        a(mf[0], muses=mu0)
        if 'v3' in dbg:
            dma = [x for x in mem if not x[0].startswith('s_')]
            sal = [x for x in mem if x[0].startswith('s_')]
            if dma and len(dma) == 1 and mem[-1] is dma[0] or (dma and len(dma) == 1):
                idx = mem.index(dma[0])
                pre_s, post_s = mem[:idx], mem[idx+1:]
                emit(rd[1:]); emit(pre_s)
                if not rd[1:] and not pre_s: emit(lo[:2]); lo = lo[2:]
                a(mf[1])
                emit(dma); emit(post_s)
                a(mf[2])
                emit(ex); emit(lo)
            else:
                emit(ex[:1]); ex = ex[1:]
                a(mf[1])
                emit(rd[1:]); emit(mem); emit(ex[:1]); ex = ex[1:]
                emit(lo[:1]); lo = lo[1:]
                a(mf[2])
                emit(ex); emit(lo)
            continue
        emit(ex[:1]); ex = ex[1:]
        if not pl['exp']:
            emit(lo[:2]); lo = lo[2:]
        a(mf[1])
        emit(rd[1:])
        emit(mem)
        emit(ex)
        emit(lo)
        a(mf[2])
    for k in range(NG, NG + 8):
        emit(plan[k]['exp']); emit(plan[k]['mem']); emit(plan[k]['lo'])
    stp.stamp('main')
    a(f"""
    v_lshlrev_b32 v{vT[1]}, 4, v{vI}
    s_lshl_b32 s{sT0}, s{sW}, 2
    s_add_u32 s{sT0}, s{sT0}, {LX}
    v_add_u32 v{vT[2]}, s{sT0}, v{vT[1]}
    v_add_u32 v{vT[1]}, {LX}, v{vT[1]}
    """)
    for qt in range(3):
        a(f'v_accvgpr_read_b32 v{vT[3]+qt}, a{aL+4*qt}')
    for qt in range(3):
        a(f'ds_write_b32 v{vT[2]}, v{vT[3]+qt} offset:{qt*256}', mdefs=['part'])
    vPr = [vT[3], vT[4], vT[5]]
    for jj in range(1, 4):
        a(f"""
        s_xor_b32 s{sT0}, s{sW}, {jj}
        s_mul_i32 s{sT0}, s{sT0}, {WREG}
        v_lshlrev_b32 v{vPr[jj-1]}, 3, v{vLane}
        v_add_u32 v{vPr[jj-1]}, s{sT0}, v{vPr[jj-1]}
        """)
    def Yreg(et, qt):
        k = et * 3 + qt
        return vS + 24 + 4 * k if k < 6 else vP + 4 * (k - 6)
    for qt in range(3):
        x = vXr + qt * 6
        for k in range(6):
            et, r = (k >> 1, 2 * (k & 1))
            a(f'v_lshlrev_b32 v{Yreg(et,qt)+r}, 16, v{x+k}')
            a(f'v_and_b32 v{Yreg(et,qt)+r+1}, 0xffff0000, v{x+k}')
        for k in range(6):
            et, r = (k >> 1, 2 * (k & 1))
            y = vr(Yreg(et, qt) + r, 2)
            a(f'v_pk_fma_f32 {y}, {y}, {vr(vSt+2*qt,2)}, {vr(vSt+2*qt,2)} op_sel:[0,1,0] op_sel_hi:[1,1,0]')
    a('s_barrier', muses=['part'])
    stp.stamp('bar1')
    vLr = vP + 12
    for qt in range(3):
        a(f'ds_read_b128 {vr(vLr+4*qt,4)}, v{vT[1]} offset:{qt*256}')
    def part_reads(qt):
        out = []
        for p in range(3):
            for jj in range(1, 4):
                b = aPart + (qt * 3 + p) * 6 + 2 * (jj - 1)
                out.append(f'ds_read_b64 {ar(b,2)}, v{vPr[jj-1]} offset:{SL+((jj-1)*9+p*3+qt)*512}')
        return out
    for t_ in part_reads(0): a(t_)
    prq = part_reads(1) + part_reads(2)
    vRinv = [vPl, vPl + 2, vPl + 4]
    for qt in range(3):
        b = vLr + 4 * qt
        a(f'v_add_f32 v{b}, v{b}, v{b+1}')
        a(f'v_add_f32 v{b+2}, v{b+2}, v{b+3}')
    for qt in range(3):
        b = vLr + 4 * qt
        a(f'v_add_f32 v{b}, v{b}, v{b+2}')
    if fallback:
        a(f"""
        v_add_f32 v{vLr+1}, v{vLr}, v{vLr+4}
        s_mov_b32 s{sT0}, {f2u(2.0**100)}
        v_add_f32 v{vLr+1}, v{vLr+1}, v{vLr+8}
        v_cmp_nle_f32 vcc, v{vLr+1}, s{sT0}
        """.replace(f'v_cmp_nle_f32 vcc, v{vLr+1}, s{sT0}', f'v_cmp_nge_f32 vcc, s{sT0}, v{vLr+1}'))
        a(f"""
        s_cmp_eq_u32 s{sFb}, 0
        s_cselect_b64 s[46:47], vcc, 0
        s_cmp_lg_u64 s[46:47], 0
        s_cbranch_scc1 LB_safe
        """)
    for qt in range(3):
        a(f'v_rcp_f32 v{vRinv[qt]}, v{vLr+4*qt}')
    xinit = []
    post = []
    nearly = 30
    def drain(lst, n):
        for _ in range(n):
            if lst:
                t_ = lst.pop(0)
                if t_.startswith('WRITE '): a(t_[6:], mdefs=['oimg'])
                else: a(t_)
    for qt in range(3):
        for p in range(3):
            d = vr(Oreg(4 * p, qt), 4); b = aPart + (qt * 3 + p) * 6
            a(f'v_mfma_f32_16x16x32_bf16 {d}, {ar(aId,4)}, {ar(b,4)}, {d}')
            drain(prq, 2 if post else 3)
            if post: drain(post, 2)
        for p in range(3):
            d = vr(Oreg(4 * p, qt), 4); b = aPart + (qt * 3 + p) * 6
            a(f'v_mfma_f32_16x16x16_bf16 {d}, {ar(aId,2)}, {ar(b+4,2)}, {d}')
            if qt == 0: drain(prq, 1)
            if post: drain(post, 3)
        md = []
        for p in range(3):
            o = Oreg(4 * p, qt)
            post.append(f'v_pk_mul_f32 {vr(o,2)}, {vr(o,2)}, {vr(vRinv[qt],2)} op_sel_hi:[1,0]')
            post.append(f'v_pk_mul_f32 {vr(o+2,2)}, {vr(o+2,2)}, {vr(vRinv[qt],2)} op_sel_hi:[1,0]')
        for p in range(3):
            o = Oreg(4 * p, qt)
            post.append(f'v_cvt_pk_bf16_f32 v{o}, v{o}, v{o+1}')
            post.append(f'v_cvt_pk_bf16_f32 v{o+1}, v{o+2}, v{o+3}')
            off = (6 * qt + 2 * p) * 1024 if qt < 2 else 36864 + 2 * p * 1024
            post.append(f'WRITE ds_write_b64 v{vOa}, {vr(o,2)} offset:{off}')
    rest = post
    drain(rest, len(rest))
    a(f's_movk_i32 s{sT0}, 6144')
    a(f's_movk_i32 s{sT1}, 12288')
    a('s_barrier', muses=['oimg'])
    stp.stamp('bar2')
    oreads_first = True
    for qt in range(3):
        for s in range(6):
            off = (6 * qt + s) * 1024 if qt < 2 else 36864 + s * 1024
            a(f'ds_read_b128 {ar(aG+(qt*6+s)*4,4)}, v{vD[0]} offset:{off}')
    fin = []
    for qt in range(3):
        cnt = 0
        for s in range(6):
            for et in range(3):
                d = vr(Yreg(et, qt), 4)
                if xinit and qt == 0 and s == 0 and et == 0: drain(xinit, len(xinit))
                a(f'v_mfma_f32_16x16x32_bf16 {d}, {ar(aW+(et*6+s)*4,4)}, {ar(aG+(qt*6+s)*4,4)}, {d}')
                cnt += 1
                if cnt >= 6 and fin: a(fin.pop(0))
        assert not fin
        x = vXr + qt * 6
        for k in range(6):
            et, r = (k >> 1, 2 * (k & 1))
            fin.append(f'v_cvt_pk_bf16_f32 v{x+k}, v{Yreg(et,qt)+r}, v{Yreg(et,qt)+r+1}')
        so = ['0', f's{sT0}', f's{sT1}'][qt]
        stf = ''
        for x_ in dbg:
            if x_.startswith('st_'): stf = ' ' + x_[3:].replace('_', ' ')
        fin.append(f'buffer_store_dwordx4 {vr(x,4)}, v{vX1a}, {OUT}, {so} offen{stf}')
        fin.append(f'buffer_store_dwordx2 {vr(x+4,2)}, v{vX1b}, {OUT}, {so} offen offset:64{stf}')
    stp.stamp('oproj')
    while fin: a(fin.pop(0))
    stp.stamp('stores')
    if stamps:
        a('s_waitcnt vmcnt(0)')
        stp.stamp('end' if fused else 'drained')
    if 'clk' in dbg:
        a('s_waitcnt vmcnt(0)')
        dbg_clock_end(a, sW)
    stp.dump(sW, WS, 4)
    a('s_endpgm')
    build_main.names = stp.names
    main = finalize(a)
    if not fallback: return main
    a = Asm()
    vA = [vT[0], vT[1]]; vMx = [vT[2], vT[3], vT[4]]
    vKf = vO
    a(f"""
    LB_safe:
    s_waitcnt vmcnt(0) lgkmcnt(0)
    s_barrier
    v_subrev_u32 v{vA[0]}, s{sWB}, v{vK[0]}
    v_subrev_u32 v{vA[1]}, s{sWB}, v{vK[1]}
    v_mov_b32 v{vMx[0]}, 0
    v_mov_b32 v{vMx[1]}, 0
    v_mov_b32 v{vMx[2]}, 0
    s_mov_b32 s{sIt}, 0
    LB_mx:
    s_lshr_b32 s{sT0}, s{sIt}, 1
    s_mul_i32 s{sT0}, s{sT0}, {SL}
    s_and_b32 s{sT1}, s{sIt}, 1
    s_lshl_b32 s{sT1}, s{sT1}, 11
    s_add_u32 s{sT0}, s{sT0}, s{sT1}
    s_add_u32 s{sT0}, s{sT0}, s{sBeg}
    s_add_u32 s{sT1}, s{sT0}, 4096
    s_add_u32 s{sT2}, s{sT0}, 8192
    """)
    for s_ in range(6):
        a(f'buffer_load_dwordx4 {vr(vKf+4*s_,4)}, v{vA[s_&1]}, {WS}, s{[sT0, sT1, sT2][s_>>1]} offen{SC}')
    for s_ in range(6):
        for qt in range(3):
            d = vr(Sreg(0, 0, qt), 4)
            a(f'v_mfma_f32_16x16x32_bf16 {d}, {vr(vKf+4*s_,4)}, {ar(aG+(qt*6+s_)*4,4)}, {vr(vNeg+4*qt,4) if s_ == 0 else d}')
    for qt in range(3):
        b = Sreg(0, 0, qt)
        a(f'v_max3_f32 v{vMx[qt]}, v{vMx[qt]}, v{b}, v{b+1}')
        a(f'v_max3_f32 v{vMx[qt]}, v{vMx[qt]}, v{b+2}, v{b+3}')
    a(f"""
    s_add_u32 s{sIt}, s{sIt}, 1
    s_cmp_lt_u32 s{sIt}, 20
    s_nop 7
    s_cbranch_scc1 LB_mx
    """)
    seg1 = finalize(a)
    a = Asm()
    m2 = [vS, vS + 1, vS + 2]
    for qt in range(3): a(f'v_mov_b32 v{m2[qt]}, v{vMx[qt]}')
    for qt in range(3): a(f'v_permlane16_swap_b32 v{vMx[qt]}, v{m2[qt]}')
    for qt in range(3):
        a(f'v_max_f32 v{vMx[qt]}, v{vMx[qt]}, v{m2[qt]}')
        a(f'v_mov_b32 v{m2[qt]}, v{vMx[qt]}')
    for qt in range(3): a(f'v_permlane32_swap_b32 v{vMx[qt]}, v{m2[qt]}')
    for qt in range(3): a(f'v_max_f32 v{vMx[qt]}, v{vMx[qt]}, v{m2[qt]}')
    a(f"""
    v_lshlrev_b32 v{vS+3}, 4, v{vI}
    s_lshl_b32 s{sT0}, s{sW}, 2
    s_add_u32 s{sT0}, s{sT0}, {LX}
    v_add_u32 v{vS+4}, s{sT0}, v{vS+3}
    v_add_u32 v{vS+3}, {LX}, v{vS+3}
    """)
    for qt in range(3): a(f'ds_write_b32 v{vS+4}, v{vMx[qt]} offset:{qt*256}', mdefs=['mx'])
    a('s_barrier', muses=['mx'])
    for qt in range(3): a(f'ds_read_b128 {vr(vS+8+4*qt,4)}, v{vS+3} offset:{qt*256}')
    for qt in range(3):
        b = vS + 8 + 4 * qt
        a(f'v_max3_f32 v{b}, v{b}, v{b+1}, v{b+2}')
        a(f'v_max_f32 v{b}, v{b}, v{b+3}')
        for r in range(4): a(f'v_sub_f32 v{vNeg+4*qt+r}, v{vNeg+4*qt+r}, v{b}')
    a(f"""
    v_add_u32 v{vA[0]}, {LI}, v{vA[0]}
    v_add_u32 v{vA[1]}, {LI}, v{vA[1]}
    """)
    for s_ in range(6):
        a(f'ds_read_b128 {vr(vKf+4*s_,4)}, v{vA[s_&1]} offset:{(s_>>1)*2048}')
    for s_ in range(6):
        for qt in range(3):
            d = vr(Sreg(1, 0, qt), 4)
            a(f'v_mfma_f32_16x16x32_bf16 {d}, {vr(vKf+4*s_,4)}, {ar(aG+(qt*6+s_)*4,4)}, {"0" if s_ == 0 else d}')
    a(f's_mov_b32 s{sOff}, s{sOff0}')
    for t_ in ring_log:
        if 'm0' in t_ and 's_add' in t_: a(t_); a('s_nop 0')
        else: a(t_)
    a(f"""
    s_mov_b32 s{sFb}, 1
    s_waitcnt vmcnt(0) lgkmcnt(0)
    s_barrier
    s_nop 15
    s_branch LB_pre
    """)
    return main + seg1 + finalize(a)

def build_fused(name, stamps=False, dbg=()):
    import gen_a
    s = f""".globl {name}
.p2align 8
.type {name},@function
{name}:
LA_start:
  s_cmp_ge_u32 s2, 252
  s_cbranch_scc1 LA_end
  s_cmp_ge_u32 s2, 216
  s_cbranch_scc1 LA_spare
"""
    fa = gen_a.build_main(stamps, dbg, fused=True)
    s += build_main(fallback=True, stamps=stamps, dbg=dbg, fused=fa)
    s += gen_a.wspin()
    s += 'LA_spare:\n' + gen_a.build_spare(fused=True)
    s += 'LA_end:\n  s_endpgm\nLB_end:\n'
    return s

def build_B(name, stamps=False, dbg=(), **kw):
    s = f""".globl {name}
.p2align 8
.type {name},@function
{name}:
  s_cmp_ge_u32 s2, 216
  s_cbranch_scc1 LB_end
"""
    if 'delay' in dbg:
        s += "  s_movk_i32 s4, 500\nLB_delay:\n  s_nop 7\n  s_sub_u32 s4, s4, 1\n  s_cmp_lg_u32 s4, 0\n  s_cbranch_scc1 LB_delay\n"
    s += build_main(fallback=('nofb' not in dbg), stamps=stamps, dbg=dbg, **kw)
    s += 'LB_end:\n  s_endpgm\n'
    return s
```

```python
import sys
sys.path.insert(0, 'gen')
from common import *
import gen_a
DESC = """.p2align 6
.amdhsa_kernel {name}
  .amdhsa_next_free_vgpr {vgpr}
  .amdhsa_next_free_sgpr {sgpr}
  .amdhsa_accum_offset {acc}
  .amdhsa_group_segment_fixed_size 0
  .amdhsa_kernarg_size 64
  .amdhsa_user_sgpr_count 2
  .amdhsa_user_sgpr_kernarg_segment_ptr 1
  .amdhsa_system_sgpr_workgroup_id_x 1
.end_amdhsa_kernel
"""
HEADER = """; TimeSformer block (temporal attention + spatial attention), gfx950, hand-written via a Python generator.
"""
def make(kernels, fn, code_span=0x8000, single=False):
    s = HEADER
    for name, grid, lds, text, vgpr, acc in kernels:
        if single: s += f'; @launch grid=({grid},1,1) block=(256,1,1) lds={lds}\n'
        else: s += f'; @launch kernel={name} grid=({grid},1,1) block=(256,1,1) lds={lds}\n'
    s += '.amdgcn_target "amdgcn-amd-amdhsa--gfx950"\n.text\n'
    s += '.set CODE_SPAN, 0x%x\n' % code_span
    seen = []
    for name, grid, lds, text, vgpr, acc in kernels:
        if name in seen: continue
        seen.append(name)
        s += text
    s += '.section .rodata,"a"\n'
    seen = []
    for name, grid, lds, text, vgpr, acc in kernels:
        if name in seen: continue
        seen.append(name)
        s += DESC.format(name=name, vgpr=vgpr, sgpr=96, acc=acc)
    open(fn, 'w').write(s)
if __name__ == '__main__':
    NA = 'standalone__video_timesformer__vision_kernel'
    A = (NA, 256, gen_a.LDS_A, gen_a.build_A(NA), 512, 256)
    make([A], 'a_only.s')
    try:
        import gen_b
        NB = 'standalone__video_timesformer__vision_b_kernel'
        B = (NB, 216, gen_b.LDS_B, gen_b.build_B(NB), 512, 256)
        make([A, B], 'ab.s')
    except ImportError as e:
        print('no B yet', e)
    As = (NA, 256, gen_a.LDS_A, gen_a.build_A(NA, True), 512, 256)
    Bs = (NB, 216, gen_b.LDS_B, gen_b.build_B(NB, True), 512, 256)
    make([As, Bs], 'ab_st.s')
    import json
    namesB = list(gen_b.build_main.names)
    json.dump([gen_a.build_main.names, namesB], open('ab_st.json', 'w'))
    Ac = (NA, 256, gen_a.LDS_A, gen_a.build_A(NA, False, ('clk',)), 512, 256)
    Bc = (NB, 216, gen_b.LDS_B, gen_b.build_B(NB, False, ('clk',)), 512, 256)
    make([Ac, Bc], 'ab_clk.s')
    Bdl = (NB, 216, gen_b.LDS_B, gen_b.build_B(NB, False, ('delay', 'clk')), 512, 256)
    make([A, Bdl], 'ab_delay.s')
    An = (NA, 256, gen_a.LDS_A, gen_a.build_A(NA, False, ('nocpf',)), 512, 256)
    make([An, B], 'ab_nocpf.s')
    for nm, dbg in {'cpf': (), 'nocpf': ('nocpf',), 'cpfp0': ('pre0',)}.items():
        Ad = (NA, 256, gen_a.LDS_A, gen_a.build_A(NA, True, dbg), 512, 256)
        make([Ad, Bs], f'ab_st_{nm}.s')
        json.dump([gen_a.build_main.names, namesB], open(f'ab_st_{nm}.json', 'w'))
    EMPTY = lambda n: (n, 256, 0, f".globl {n}\n.p2align 8\n.type {n},@function\n{n}:\n  s_endpgm\n", 8, 8)
    make([A, B, EMPTY('e1_kernel')], 'ab_e1.s')
    make([A, B, EMPTY('e1_kernel'), EMPTY('e1_kernel'), EMPTY('e1_kernel')], 'ab_e3.s')
```
